```python
import torch

def _softmax(x, axis=-1):
    return torch.softmax(x, dim=axis)
def _gelu(x):
    return torch.nn.functional.gelu(x, approximate="tanh")
def _silu(x):
    return torch.nn.functional.silu(x)
def _sigmoid(x):
    return torch.sigmoid(x)
def _layernorm(x, axis=-1, eps=1e-5):
    m = x.mean(dim=axis, keepdim=True)
    v = x.var(dim=axis, keepdim=True, unbiased=False)
    return (x - m) / torch.sqrt(v + eps)
def _scatter_add(tgt, idx, src, axis=0):
    return tgt.clone().index_add_(axis, idx, src)
def _segment_sum(src, seg, n):
    out = torch.zeros((n,) + src.shape[1:], dtype=src.dtype)
    return out.index_add_(0, seg, src)
def _pad(x, pw):
    flat = tuple(v for pair in reversed(pw) for v in pair)
    return torch.nn.functional.pad(x, flat)

kernel_name = 'interleave_layers__grouped_kv_mqa__dense_activation_relu__prompt'

def setup_inputs():

    _w = (lambda a: (lambda t: t.to(torch.bfloat16) if t.is_floating_point() else t)(torch.as_tensor(a)))
    def _A_setup():
        B, S, D, H = 1, 2048, 512, 32
        Dh = D // H
        return {
            "x": _w((lambda *s: torch.randn(*s, dtype=torch.bfloat16) * 0.05)(B, S, D)),
            "wq": _w((lambda *s: torch.randn(*s, dtype=torch.bfloat16) * 0.05)(D, H * Dh)),
            "wk": _w((lambda *s: torch.randn(*s, dtype=torch.bfloat16) * 0.05)(D, Dh)),
            "wv": _w((lambda *s: torch.randn(*s, dtype=torch.bfloat16) * 0.05)(D, Dh)),
            "wo": _w((lambda *s: torch.randn(*s, dtype=torch.bfloat16) * 0.05)(H * Dh, D)),
        }
    _A_in = _A_setup()

    def _B_setup():
        B, S, D, Dff = 1, 2048, 512, 1792
        return {
            "x": _w((lambda *s: torch.randn(*s, dtype=torch.bfloat16) * 0.05)(B, S, D)),
            "w1": _w((lambda *s: torch.randn(*s, dtype=torch.bfloat16) * 0.05)(D, Dff)),
            "w2": _w((lambda *s: torch.randn(*s, dtype=torch.bfloat16) * 0.05)(Dff, D)),
        }
    _B_in = _B_setup()

    return {
        "A_x": _A_in["x"],
        "A_wq": _A_in["wq"],
        "A_wk": _A_in["wk"],
        "A_wv": _A_in["wv"],
        "A_wo": _A_in["wo"],
        "B_x": _B_in["x"],
        "B_w1": _B_in["w1"],
        "B_w2": _B_in["w2"],
    }

def reference(A_x, A_wq, A_wk, A_wv, A_wo, B_x, B_w1, B_w2):
    def _A_ref(x, wq, wk, wv, wo):
        B, S, D = x.shape
        H = 32
        Dh = D // H
        q = (lambda x, *d: x.permute(*d))((x @ wq).reshape(B, S, H, Dh), 0, 2, 1, 3)
        k = x @ wk
        v = x @ wv
        scores = torch.einsum("bhqd,bkd->bhqk", q, k) * (Dh ** -0.5)
        p = _softmax(scores, axis=-1)
        o = torch.einsum("bhqk,bkd->bhqd", p, v)
        return (lambda x, *d: x.permute(*d))(o, 0, 2, 1, 3).reshape(B, S, H * Dh) @ wo

    def _B_ref(x, w1, w2):
        h = torch.einsum("bsd,df->bsf", x, w1)
        zero = torch.zeros_like(h)
        h = torch.maximum(h, zero)
        return torch.einsum("bsf,fd->bsd", h, w2)

    x = A_x
    x = x + _A_ref(_layernorm(x, axis=-1), A_wq, A_wk, A_wv, A_wo)
    x = x + _B_ref(_layernorm(x, axis=-1), B_w1, B_w2)
    x = x + _A_ref(_layernorm(x, axis=-1), A_wq, A_wk, A_wv, A_wo)
    x = x + _B_ref(_layernorm(x, axis=-1), B_w1, B_w2)
    return x
```

```python
import sys

OUT = "interleave_layers__grouped_kv_mqa__dense_activation_relu__prompt.s"

KB = 1024
WQ_F = 0
WKV_F = WQ_F + 512 * KB
WO_F = WKV_F + 32 * KB
W1_F = WO_F + 512 * KB
W2_F = W1_F + 1792 * KB
CSQ = W2_F + 1792 * KB
CS1 = CSQ + 2 * KB
KN2 = CS1 + 8 * KB
X_F = KN2 + 1 * KB
X_F = (X_F + 4095) // 4096 * 4096
Q_F = X_F + 2048 * KB
K_F = Q_F + 2048 * KB
VT_F = K_F + 64 * KB
O_F = VT_F + 64 * KB
H_F = O_F + 2048 * KB
WS_END = H_F + 7168 * KB

class Asm:
    def __init__(self):
        self.lines = []
    def __call__(self, s):
        for l in s.strip("\n").split("\n"):
            self.lines.append("    " + l.strip() if not l.strip().endswith(":") else l.strip())
    def nop(self, n):
        while n > 0:
            k = min(n, 16)
            self(f"s_nop {k-1}")
            n -= k
    def text(self):
        return "\n".join(self.lines) + "\n"

def vr(a, n=4):
    return f"v[{a}:{a+n-1}]"

KERNELS = []

def begin(a, name, nwg):
    a(f".p2align 8\n{name}:")
    a(f"""
    s_cmp_ge_u32 s2, {nwg}
    s_cbranch_scc1 {name}_exit
    s_load_dwordx16 s[16:31], s[0:1], 0
    s_load_dwordx4 s[32:35], s[0:1], 64
    s_load_dwordx2 s[36:37], s[0:1], 80
    v_lshrrev_b32 v2, 6, v0
    v_and_b32 v1, 63, v0
    v_readfirstlane_b32 s3, v2
    v_lshlrev_b32 v3, 4, v1
    s_waitcnt lgkmcnt(0)
    s_mov_b32 s40, s36
    s_and_b32 s41, s37, 0xffff
    s_mov_b32 s42, {WS_END}
    s_mov_b32 s43, 0x00020000
    """)

def end(a, name):
    a(f"{name}_exit:\ns_endpgm")

def srd(a, d, sp, nbytes):
    a(f"""
    s_mov_b32 s{d}, s{sp}
    s_and_b32 s{d+1}, s{sp+1}, 0xffff
    s_mov_b32 s{d+2}, {nbytes}
    s_mov_b32 s{d+3}, 0x00020000
    """)

P_X, P_WQ, P_WK, P_WV, P_WO, P_BX, P_W1, P_W2, P_OUT, P_DBG, P_WS = 16, 18, 20, 22, 24, 26, 28, 30, 32, 34, 36

def gen_prep():
    a = Asm()
    name = "prep_kernel"
    NW_Q, NW_O, NW_1, NW_2 = 128, 128, 448, 448
    WG_W = (NW_Q + NW_O + NW_1 + NW_2) // 4
    WG_KV = 2
    WG_X = 64
    WG_CS = 4 + 14
    B_KV = WG_W
    B_X = B_KV + WG_KV
    B_CS = B_X + WG_X
    NWG = B_CS + WG_CS
    begin(a, name, NWG)
    a(f"""
    v_and_b32 v4, 31, v1
    v_lshrrev_b32 v5, 5, v1
    s_lshl_b32 s4, s2, 2
    s_add_u32 s4, s4, s3
    s_cmp_ge_u32 s2, {B_CS}
    s_cbranch_scc1 prep_cs
    s_cmp_ge_u32 s2, {B_X}
    s_cbranch_scc1 prep_x
    s_cmp_ge_u32 s2, {B_KV}
    s_cbranch_scc1 prep_kv
    """)
    a(f"""
    s_cmp_ge_u32 s4, {NW_Q + NW_O + NW_1}
    s_cbranch_scc1 prep_w2
    s_cmp_ge_u32 s4, {NW_Q + NW_O}
    s_cbranch_scc1 prep_w1
    s_cmp_ge_u32 s4, {NW_Q}
    s_cbranch_scc1 prep_wo
    """)
    srd(a, 44, P_WQ, 512 * 1024)
    a(f"""
    s_mov_b32 s5, 1024
    s_mov_b32 s8, {WQ_F}
    s_branch prep_k32
    prep_wo:
    """)
    srd(a, 44, P_WO, 512 * 1024)
    a(f"""
    s_mov_b32 s5, 1024
    s_mov_b32 s8, {WO_F}
    s_sub_u32 s4, s4, {NW_Q}
    s_branch prep_k32
    prep_w1:
    """)
    srd(a, 44, P_W1, 512 * 3584)
    a(f"""
    s_mov_b32 s5, 3584
    s_mov_b32 s8, {W1_F}
    s_sub_u32 s4, s4, {NW_Q + NW_O}
    prep_k32:
    s_lshr_b32 s6, s4, 3
    s_and_b32 s7, s4, 7
    s_lshl_b32 s7, s7, 2
    s_lshl_b32 s9, s4, 12
    s_add_u32 s8, s8, s9
    s_branch prep_wgo
    prep_w2:
    """)
    srd(a, 44, P_W2, 1792 * 1024)
    a(f"""
    s_mov_b32 s5, 1024
    s_mov_b32 s8, {W2_F}
    s_sub_u32 s4, s4, {NW_Q + NW_O + NW_1}
    s_mov_b32 s9, 153391690
    s_mul_hi_u32 s6, s4, s9
    s_mul_i32 s9, s6, 28
    s_sub_u32 s7, s4, s9
    s_lshl_b32 s7, s7, 2
    s_lshl_b32 s9, s4, 12
    s_add_u32 s8, s8, s9
    prep_wgo:
    s_lshl_b32 s9, s5, 2
    v_mul_u32_u24 v6, s9, v5
    v_lshl_add_u32 v6, v4, 1, v6
    s_lshl_b32 s9, s7, 4
    s_mul_i32 s9, s9, s5
    s_lshl_b32 s10, s6, 6
    s_add_u32 s9, s9, s10
    s_mul_i32 s11, s5, 5
    """)
    for t in range(4):
        for e in range(8):
            reg = 24 + t * 8 + e
            a(f"buffer_load_ushort v{reg}, v6, s[44:47], s9 offen")
            if e == 3 or e == 7:
                a("s_add_u32 s9, s9, s11")
            else:
                a("s_add_u32 s9, s9, s5")
    for t in range(4):
        a(f"s_waitcnt vmcnt({(3 - t) * 8 + t})")
        for r in range(4):
            a(f"v_lshl_or_b32 v{8 + t * 4 + r}, v{24 + t * 8 + 2 * r + 1}, 16, v{24 + t * 8 + 2 * r}")
        a(f"buffer_store_dwordx4 {vr(8 + t * 4)}, v3, s[40:43], s8 offen offset:{t * 1024}")
    a("s_endpgm")
    a("prep_kv:")
    srd(a, 44, P_WK, 512 * 32)
    srd(a, 48, P_WV, 512 * 32)
    a(f"""
    s_sub_u32 s4, s4, {B_KV * 4}
    s_lshl_b32 s8, s4, 12
    s_add_u32 s8, s8, {WKV_F}
    v_and_b32 v6, 15, v1
    v_lshlrev_b32 v6, 1, v6
    v_lshl_add_u32 v6, v5, 7, v6
    s_lshl_b32 s9, s4, 11
    v_cmp_gt_u32 vcc, 16, v4
    s_mov_b64 s[12:13], vcc
    s_not_b64 s[14:15], vcc
    """)
    for half, (m, sr) in enumerate(((12, 44), (14, 48))):
        a(f"s_mov_b64 exec, s[{m}:{m+1}]")
        for t in range(4):
            for e in range(8):
                reg = 24 + t * 8 + e
                row = t * 16 + (e & 3) + (e >> 2) * 8
                a(f"buffer_load_ushort v{reg}, v6, s[{sr}:{sr+3}], s9 offen offset:{row * 32}")
    a("s_mov_b64 exec, -1\ns_waitcnt vmcnt(0)")
    for t in range(4):
        for r in range(4):
            a(f"v_lshl_or_b32 v{8 + t * 4 + r}, v{24 + t * 8 + 2 * r + 1}, 16, v{24 + t * 8 + 2 * r}")
        a(f"buffer_store_dwordx4 {vr(8 + t * 4)}, v3, s[40:43], s8 offen offset:{t * 1024}")
    a("s_endpgm")
    a("prep_x:")
    srd(a, 44, P_X, 2048 * 1024)
    a(f"""
    s_sub_u32 s4, s4, {B_X * 4}
    s_lshr_b32 s6, s4, 2
    s_and_b32 s7, s4, 3
    v_lshlrev_b32 v6, 10, v4
    v_lshl_add_u32 v6, v5, 3, v6
    s_lshl_b32 s9, s6, 15
    s_lshl_b32 s10, s7, 8
    s_add_u32 s9, s9, s10
    s_lshl_b32 s8, s4, 13
    s_add_u32 s8, s8, {X_F}
    s_add_u32 s10, s8, 4096
    """)
    for t in range(8):
        a(f"buffer_load_dwordx2 {vr(8 + t * 4, 2)}, v6, s[44:47], s9 offen offset:{t * 32}")
        a(f"buffer_load_dwordx2 {vr(10 + t * 4, 2)}, v6, s[44:47], s9 offen offset:{t * 32 + 16}")
    for t in range(8):
        a(f"s_waitcnt vmcnt({(7 - t) * 2 + t})")
        a(f"buffer_store_dwordx4 {vr(8 + t * 4)}, v3, s[40:43], s{8 if t < 4 else 10} offen offset:{(t % 4) * 1024}")
    a("s_endpgm")
    a("prep_cs:")
    a(f"""
    s_sub_u32 s4, s2, {B_CS}
    s_cmp_ge_u32 s4, 4
    s_cbranch_scc1 prep_cs1
    """)
    srd(a, 44, P_WQ, 512 * 1024)
    a(f"""
    s_mov_b32 s5, 1024
    s_mov_b32 s8, {CSQ}
    s_branch prep_csgo
    prep_cs1:
    """)
    srd(a, 44, P_W1, 512 * 3584)
    a(f"""
    s_mov_b32 s5, 3584
    s_mov_b32 s8, {CS1}
    s_sub_u32 s4, s4, 4
    prep_csgo:
    s_lshl_b32 s9, s4, 9
    s_add_u32 s8, s8, s9
    s_lshl_b32 s9, s3, 7
    s_mul_i32 s9, s9, s5
    s_lshl_b32 s10, s4, 8
    s_add_u32 s9, s9, s10
    v_lshlrev_b32 v6, 2, v1
    v_mov_b32 v8, 0
    v_mov_b32 v9, 0
    s_mov_b32 s12, 0x00003f80
    s_mov_b32 s13, 0x3f800000
    s_mov_b32 s14, 4
    prep_csloop:
    """)
    for i in range(32):
        a(f"buffer_load_dword v{16 + i}, v6, s[44:47], s9 offen\ns_add_u32 s9, s9, s5")
    for i in range(32):
        a(f"s_waitcnt vmcnt({31 - i})")
        a(f"v_dot2_f32_bf16 v8, v{16 + i}, s12, v8")
        a(f"v_dot2_f32_bf16 v9, v{16 + i}, s13, v9")
    a(f"""
    s_sub_u32 s14, s14, 1
    s_cmp_lg_u32 s14, 0
    s_cbranch_scc1 prep_csloop
    s_nop 3
    v_lshlrev_b32 v7, 3, v0
    ds_write_b64 v7, v[8:9]
    s_waitcnt lgkmcnt(0)
    s_barrier
    s_cmp_lg_u32 s3, 0
    s_cbranch_scc1 {name}_exit
    v_lshlrev_b32 v7, 3, v1
    ds_read_b64 v[10:11], v7 offset:512
    ds_read_b64 v[12:13], v7 offset:1024
    ds_read_b64 v[14:15], v7 offset:1536
    s_waitcnt lgkmcnt(0)
    v_add_f32 v8, v8, v10
    v_add_f32 v9, v9, v11
    v_add_f32 v12, v12, v14
    v_add_f32 v13, v13, v15
    v_add_f32 v8, v8, v12
    v_add_f32 v9, v9, v13
    buffer_store_dwordx2 v[8:9], v7, s[40:43], s8 offen
    """)
    end(a, name)
    KERNELS.append((name, a.text(), 64, 56))
    return f"; @launch kernel={name} grid=({NWG},1,1) block=(256,1,1) lds=2048"

def tile_map(a, sid, stb, snb):
    a(f"""
    s_and_b32 s60, s{sid}, 7
    s_lshr_b32 s61, s{sid}, 3
    s_lshr_b32 s{stb}, s60, 1
    s_lshl_b32 s{stb}, s{stb}, 3
    s_lshr_b32 s62, s61, 2
    s_add_u32 s{stb}, s{stb}, s62
    s_and_b32 s{snb}, s60, 1
    s_lshl_b32 s{snb}, s{snb}, 2
    s_and_b32 s62, s61, 3
    s_add_u32 s{snb}, s{snb}, s62
    """)

def bf16r(a, d, s):
    a(f"v_cvt_pk_bf16_f32 v{d}, v{s}, v{s}\nv_lshlrev_b32 v{d}, 16, v{d}")

def stats_finish(a, s1, s2, vm, vr_, t0, t1):
    a(f"""
    v_mul_f32 v{t0}, 0x3b000000, v{s1}
    v_mul_f32 v{t1}, 0x3b000000, v{s2}
    v_fma_f32 v{t1}, -v{t0}, v{t0}, v{t1}
    v_max_f32 v{t1}, 0, v{t1}
    """)
    bf16r(a, vm, t0)
    bf16r(a, t1, t1)
    a(f"v_add_f32 v{t1}, 0x3727c5ac, v{t1}")
    bf16r(a, t1, t1)
    a(f"v_sqrt_f32 v{t1}, v{t1}\ns_nop 0")
    bf16r(a, t1, t1)
    a(f"v_rcp_f32 v{vr_}, v{t1}\ns_nop 0")

STAT_LDS = 0
PRIV_LDS = 4096
RED_LDS = 8192

def reduce4(a, acc, tmp):
    a(f"""
    s_lshl_b32 s60, s3, 14
    v_add_u32 v4, s60, v3
    """)
    for t in range(4):
        a(f"s_cmp_eq_u32 s3, {t}\ns_cbranch_scc1 L{a.uid}_skipw{t}")
        for g in range(4):
            a(f"ds_write_b128 v4, {vr(acc + t * 16 + g * 4)} offset:{RED_LDS + (t * 4 + g) * 1024}")
        a(f"L{a.uid}_skipw{t}:")
    for t in range(4):
        a(f"s_cmp_lg_u32 s3, {t}\ns_cbranch_scc1 L{a.uid}_skipm{t}")
        for r in range(16):
            a(f"v_mov_b32 v{tmp + r}, v{acc + t * 16 + r}")
        a(f"L{a.uid}_skipm{t}:")
    a(f"""
    s_waitcnt lgkmcnt(0)
    s_barrier
    s_lshl_b32 s60, s3, 12
    v_add_u32 v4, s60, v3
    """)
    for d in range(1, 4):
        a(f"""
        s_add_u32 s61, s3, {d}
        s_and_b32 s61, s61, 3
        s_lshl_b32 s61, s61, 14
        v_add_u32 v5, s61, v4
        """)
        for g in range(4):
            a(f"ds_read_b128 {vr(acc + (d - 1) * 16 + g * 4)}, v5 offset:{RED_LDS + g * 1024}")
    for d in range(1, 4):
        a(f"s_waitcnt lgkmcnt({(3 - d) * 4})")
        for r in range(16):
            a(f"v_add_f32 v{tmp + r}, v{tmp + r}, v{acc + (d - 1) * 16 + r}")

def stats_exchange(a, S, mean, rstd):
    a(f"""
    s_lshl_b32 s60, s3, 10
    v_lshlrev_b32 v4, 3, v1
    v_add_u32 v4, s60, v4
    ds_write_b64 v4, v[{S}:{S+1}] offset:{STAT_LDS}
    ds_write_b64 v4, v[{S+2}:{S+3}] offset:{STAT_LDS + 512}
    v_and_b32 v5, 31, v1
    v_lshlrev_b32 v5, 3, v5
    s_waitcnt lgkmcnt(0)
    s_barrier
    """)
    for t in range(2):
        for w in range(4):
            for h in range(2):
                i = w * 2 + h
                a(f"ds_read_b64 v[{16 + 2 * i}:{17 + 2 * i}], v5 offset:{STAT_LDS + w * 1024 + t * 512 + h * 256}")
        a("s_waitcnt lgkmcnt(0)")
        for i in range(1, 8):
            a(f"v_add_f32 v16, v16, v{16 + 2 * i}\nv_add_f32 v17, v17, v{17 + 2 * i}")
        stats_finish(a, 16, 17, mean + t, rstd + t, 18, 19)

def gen_qkv():
    a = Asm(); a.uid = "qkv"
    name = "qkv_kernel"
    NWG = 288
    begin(a, name, NWG)
    VA, VB, ACC, CS = 64, 128, 192, 32
    S = 8
    MEAN, RSTD = 12, 14
    a(f"""
    s_mov_b32 s50, 0x3f803f80
    v_mov_b32 v{S}, 0
    v_mov_b32 v{S+1}, 0
    v_mov_b32 v{S+2}, 0
    v_mov_b32 v{S+3}, 0
    s_cmp_lt_u32 s2, 32
    s_cbranch_scc1 qkv_kv
    s_sub_u32 s4, s2, 32
    """)
    tile_map(a, 4, 5, 6)
    a(f"""
    s_lshl_b32 s8, s6, 16
    s_lshl_b32 s9, s3, 13
    s_add_u32 s8, s8, s9
    s_add_u32 s8, s8, {WQ_F}
    s_lshl_b32 s10, s5, 16
    s_add_u32 s10, s10, s9
    s_add_u32 s10, s10, {X_F}
    s_add_u32 s9, s8, 32768
    s_add_u32 s11, s10, 32768
    s_add_u32 s12, s8, 4096
    s_add_u32 s13, s9, 4096
    s_add_u32 s14, s10, 4096
    s_add_u32 s15, s11, 4096
    """)
    for kt in range(8):
        o = (kt % 4) * 1024
        sa = (8, 9) if kt < 4 else (12, 13)
        sb = (10, 11) if kt < 4 else (14, 15)
        a(f"buffer_load_dwordx4 {vr(VA + kt * 8)}, v3, s[40:43], s{sa[0]} offen offset:{o}")
        a(f"buffer_load_dwordx4 {vr(VA + kt * 8 + 4)}, v3, s[40:43], s{sa[1]} offen offset:{o}")
        a(f"buffer_load_dwordx4 {vr(VB + kt * 8)}, v3, s[40:43], s{sb[0]} offen offset:{o}")
        a(f"buffer_load_dwordx4 {vr(VB + kt * 8 + 4)}, v3, s[40:43], s{sb[1]} offen offset:{o}")
    a(f"""
    v_lshrrev_b32 v4, 5, v1
    v_lshlrev_b32 v4, 4, v4
    s_lshl_b32 s60, s6, 8
    s_add_u32 s60, s60, {CSQ}
    """)
    for n in range(2):
        for j in range(4):
            a(f"buffer_load_dwordx4 {vr(CS + n * 16 + j * 4)}, v4, s[40:43], s60 offen offset:{n * 128 + j * 32}")
    for kt in range(8):
        a(f"s_waitcnt vmcnt({(7 - kt) * 4 + 8})")
        for n in range(2):
            for t in range(2):
                c = vr(ACC + (n * 2 + t) * 16, 16)
                a(f"v_mfma_f32_32x32x16_bf16 {c}, {vr(VA + kt * 8 + n * 4)}, {vr(VB + kt * 8 + t * 4)}, {'0' if kt == 0 else c}")
        for t in range(2):
            for r in range(4):
                b = VB + kt * 8 + t * 4 + r
                a(f"v_dot2_f32_bf16 v{S + 2 * t}, v{b}, s50, v{S + 2 * t}")
                a(f"v_dot2_f32_bf16 v{S + 2 * t + 1}, v{b}, v{b}, v{S + 2 * t + 1}")
    a.nop(4)
    stats_exchange(a, S, MEAN, RSTD)
    reduce4(a, ACC, VA)
    a("s_waitcnt vmcnt(0)")
    a(f"""
    s_and_b32 s60, s3, 1
    s_cmp_eq_u32 s60, 0
    s_cbranch_scc1 qkv_t0
    v_mov_b32 v{MEAN}, v{MEAN+1}
    v_mov_b32 v{RSTD}, v{RSTD+1}
    qkv_t0:
    s_cmp_lt_u32 s3, 2
    s_cbranch_scc1 qkv_n0
    """)
    for r in range(16):
        a(f"v_mov_b32 v{CS + r}, v{CS + 16 + r}")
    a(f"""
    qkv_n0:
    v_mul_f32 v{RSTD}, 0x3eb8aa3b, v{RSTD}
    """)
    for r in range(16):
        a(f"v_fma_f32 v{VA + r}, -v{MEAN}, v{CS + r}, v{VA + r}")
        a(f"v_mul_f32 v{VA + r}, v{RSTD}, v{VA + r}")
    for r in range(8):
        a(f"v_cvt_pk_bf16_f32 v{VB + r}, v{VA + 2 * r}, v{VA + 2 * r + 1}")
    a(f"""
    s_lshl_b32 s8, s5, 1
    s_add_u32 s8, s8, s60
    s_lshl_b32 s8, s8, 5
    s_lshr_b32 s61, s3, 1
    s_lshl_b32 s9, s6, 1
    s_add_u32 s9, s9, s61
    s_lshl_b32 s9, s9, 1
    s_add_u32 s8, s8, s9
    s_lshl_b32 s8, s8, 10
    s_add_u32 s8, s8, {Q_F}
    buffer_store_dwordx4 {vr(VB)}, v3, s[40:43], s8 offen
    buffer_store_dwordx4 {vr(VB + 4)}, v3, s[40:43], s8 offen offset:1024
    s_endpgm
    """)
    a.uid = "kv"
    CK, CV, ONES = 32, 48, 20
    a(f"""
    qkv_kv:
    s_lshl_b32 s9, s3, 13
    s_add_u32 s8, s9, {WKV_F}
    s_lshl_b32 s10, s2, 16
    s_add_u32 s10, s10, s9
    s_add_u32 s10, s10, {X_F}
    s_add_u32 s11, s10, 32768
    s_add_u32 s12, s8, 4096
    s_add_u32 s14, s10, 4096
    s_add_u32 s15, s11, 4096
    """)
    for kt in range(8):
        o = (kt % 4) * 1024
        sa = 8 if kt < 4 else 12
        sb = (10, 11) if kt < 4 else (14, 15)
        a(f"buffer_load_dwordx4 {vr(VA + kt * 8)}, v3, s[40:43], s{sa} offen offset:{o}")
        a(f"buffer_load_dwordx4 {vr(VB + kt * 8)}, v3, s[40:43], s{sb[0]} offen offset:{o}")
        a(f"buffer_load_dwordx4 {vr(VB + kt * 8 + 4)}, v3, s[40:43], s{sb[1]} offen offset:{o}")
    for r in range(4):
        a(f"v_mov_b32 v{ONES + r}, s50")
    for kt in range(8):
        a(f"s_waitcnt vmcnt({(7 - kt) * 3})")
        w = vr(VA + kt * 8)
        for t in range(2):
            x = vr(VB + kt * 8 + t * 4)
            c = vr(ACC + t * 16, 16)
            a(f"v_mfma_f32_32x32x16_bf16 {c}, {w}, {x}, {'0' if kt == 0 else c}")
            c = vr(ACC + (2 + t) * 16, 16)
            a(f"v_mfma_f32_32x32x16_bf16 {c}, {x}, {w}, {'0' if kt == 0 else c}")
        c = vr(CK, 16)
        a(f"v_mfma_f32_32x32x16_bf16 {c}, {w}, {vr(ONES)}, {'0' if kt == 0 else c}")
        c = vr(CV, 16)
        a(f"v_mfma_f32_32x32x16_bf16 {c}, {vr(ONES)}, {w}, {'0' if kt == 0 else c}")
        for t in range(2):
            for r in range(4):
                b = VB + kt * 8 + t * 4 + r
                a(f"v_dot2_f32_bf16 v{S + 2 * t}, v{b}, s50, v{S + 2 * t}")
                a(f"v_dot2_f32_bf16 v{S + 2 * t + 1}, v{b}, v{b}, v{S + 2 * t + 1}")
    a.nop(4)
    stats_exchange(a, S, MEAN, RSTD)
    a(f"""
    s_lshl_b32 s60, s3, 9
    v_and_b32 v4, 31, v1
    v_lshlrev_b32 v4, 2, v4
    v_add_u32 v4, s60, v4
    ds_write_b32 v4, v{MEAN} offset:{PRIV_LDS}
    ds_write_b32 v4, v{RSTD} offset:{PRIV_LDS + 128}
    ds_write_b32 v4, v{MEAN+1} offset:{PRIV_LDS + 256}
    ds_write_b32 v4, v{RSTD+1} offset:{PRIV_LDS + 384}
    v_lshrrev_b32 v5, 5, v1
    v_lshlrev_b32 v5, 4, v5
    v_add_u32 v5, s60, v5
    """)
    for t in range(2):
        for j in range(4):
            a(f"ds_read_b128 {vr(VB + t * 16 + j * 4)}, v5 offset:{PRIV_LDS + t * 256 + j * 32}")
            a(f"ds_read_b128 {vr(VB + 32 + t * 16 + j * 4)}, v5 offset:{PRIV_LDS + t * 256 + 128 + j * 32}")
    a("s_waitcnt lgkmcnt(0)")
    for t in range(2):
        for r in range(8):
            a(f"v_fma_f32 v{ACC + t * 16 + r}, -v{MEAN + t}, v{CK + r}, v{ACC + t * 16 + r}")
        for r in range(16):
            a(f"v_fma_f32 v{ACC + (2 + t) * 16 + r}, -v{VB + t * 16 + r}, v{CV}, v{ACC + (2 + t) * 16 + r}")
    reduce4(a, ACC, VA)
    a(f"""
    s_and_b32 s60, s3, 1
    s_lshl_b32 s8, s2, 1
    s_add_u32 s8, s8, s60
    s_cmp_ge_u32 s3, 2
    s_cbranch_scc1 kv_v
    s_cmp_eq_u32 s60, 0
    s_cbranch_scc1 kv_k0
    v_mov_b32 v{RSTD}, v{RSTD+1}
    kv_k0:
    """)
    for r in range(8):
        a(f"v_mul_f32 v{VA + r}, v{RSTD}, v{VA + r}")
    for r in range(4):
        a(f"v_cvt_pk_bf16_f32 v{VA + 16 + r}, v{VA + 2 * r}, v{VA + 2 * r + 1}")
    a(f"""
    s_lshl_b32 s9, s8, 10
    s_add_u32 s9, s9, {K_F}
    buffer_store_dwordx4 {vr(VA + 16)}, v3, s[40:43], s9 offen
    v_mov_b32 v8, 0
    """)
    for r in range(4):
        a(f"v_dot2_f32_bf16 v8, v{VA + 16 + r}, v{VA + 16 + r}, v8")
    a.nop(4)
    for i, x in enumerate((32, 16, 8, 4, 2, 1)):
        a(f"""
        v_xor_b32 v9, {x}, v1
        v_lshlrev_b32 v9, 2, v9
        ds_bpermute_b32 v10, v9, v8
        s_waitcnt lgkmcnt(0)
        {'v_add_f32' if i == 0 else 'v_max_f32'} v8, v8, v10
        """)
    a(f"""
    s_lshl_b32 s9, s8, 2
    s_add_u32 s9, s9, {KN2}
    v_mov_b32 v9, 0
    s_mov_b64 exec, 1
    buffer_store_dword v8, v9, s[40:43], s9 offen
    s_endpgm
    kv_v:
    s_cmp_eq_u32 s60, 0
    s_cbranch_scc1 kv_v0
    """)
    for r in range(16):
        a(f"v_mov_b32 v{VB + 32 + r}, v{VB + 48 + r}")
    a("kv_v0:")
    for r in range(16):
        a(f"v_mul_f32 v{VA + r}, v{VB + 32 + r}, v{VA + r}")
    for r in range(8):
        a(f"v_cvt_pk_bf16_f32 v{VA + 16 + r}, v{VA + 2 * r}, v{VA + 2 * r + 1}")
    a(f"""
    v_and_b32 v4, 15, v1
    v_lshrrev_b32 v5, 5, v1
    v_lshl_add_u32 v4, v5, 4, v4
    v_lshlrev_b32 v4, 4, v4
    s_lshl_b32 s9, s8, 10
    s_add_u32 s9, s9, {VT_F}
    s_mov_b32 s12, 0xffff0000
    s_mov_b32 s13, 0xffff0000
    s_mov_b64 exec, s[12:13]
    buffer_store_dwordx4 {vr(VA + 16)}, v4, s[40:43], s9 offen
    buffer_store_dwordx4 {vr(VA + 20)}, v4, s[40:43], s9 offen offset:512
    """)
    end(a, name)
    KERNELS.append((name, a.text(), 256, 72))
    return f"; @launch kernel={name} grid=({NWG},1,1) block=(256,1,1) lds={RED_LDS + 65536}"

def gen_att():
    a = Asm(); a.uid = "att"
    name = "att_kernel"
    NWG = 256
    begin(a, name, NWG)
    Q, NEGM, O = 4, 16, 32
    SB = (48, 64)
    P = 80
    KF = (88, 92)
    VF = ((96, 100), (104, 108))
    LK, LV = 0, 65536
    a(f"""
    s_lshr_b32 s5, s2, 3
    s_and_b32 s6, s2, 7
    s_and_b32 s7, s3, 1
    s_lshl_b32 s8, s5, 1
    s_add_u32 s8, s8, s7
    s_lshr_b32 s9, s3, 1
    s_lshl_b32 s10, s6, 2
    s_add_u32 s9, s9, s10
    s_lshl_b32 s8, s8, 5
    s_add_u32 s8, s8, s9
    s_lshl_b32 s8, s8, 10
    s_add_u32 s9, s8, {Q_F}
    s_add_u32 s8, s8, {O_F}
    buffer_load_dwordx4 {vr(Q)}, v3, s[40:43], s9 offen
    v_lshlrev_b32 v8, 2, v1
    s_mov_b32 s10, {KN2}
    buffer_load_dword v9, v8, s[40:43], s10 offen
    """)
    a(f"""
    s_lshl_b32 s10, s3, 11
    s_add_u32 s11, s10, {K_F}
    s_add_u32 s12, s10, {VT_F}
    """)
    for c in range(4):
        a(f"""
        s_add_u32 m0, s10, {LK + c * 16384}
        s_add_u32 s13, s11, {c * 16384}
        buffer_load_dwordx4 v3, s[40:43], s13 offen lds
        buffer_load_dwordx4 v3, s[40:43], s13 offen offset:1024 lds
        s_add_u32 m0, s10, {LV + c * 16384}
        s_add_u32 s13, s12, {c * 16384}
        buffer_load_dwordx4 v3, s[40:43], s13 offen lds
        buffer_load_dwordx4 v3, s[40:43], s13 offen offset:1024 lds
        """)
    a(f"""
    v_and_b32 v10, 31, v1
    v_cmp_eq_u32 vcc, 16, v10
    v_cmp_eq_u32 s[12:13], 20, v10
    s_or_b64 s[12:13], vcc, s[12:13]
    v_mov_b32 v11, 0
    v_mov_b32 v12, 0x3f803f80
    s_nop 1
    v_cndmask_b32 v11, v11, v12, s[12:13]
    """)
    for b in range(2):
        for t in range(2):
            for r in range(4):
                a(f"v_mov_b32 v{VF[b][t] + r}, v11")
    a(f"""
    v_lshrrev_b32 v12, 5, v1
    v_lshl_add_u32 v12, v12, 4, v10
    v_lshlrev_b32 v12, 4, v12
    v_add_u32 v12, {LV}, v12
    s_mov_b32 s14, 0x0000ffff
    s_mov_b32 s15, 0x0000ffff
    s_waitcnt vmcnt(16)
    v_mov_b32 v13, 0
    """)
    for r in range(4):
        a(f"v_dot2_f32_bf16 v13, v{Q + r}, v{Q + r}, v13")
    a.nop(4)
    a(f"""
    v_xor_b32 v14, 32, v1
    v_lshlrev_b32 v14, 2, v14
    ds_bpermute_b32 v15, v14, v13
    s_waitcnt lgkmcnt(0)
    v_add_f32 v13, v13, v15
    """)
    for x in (32, 16, 8, 4, 2, 1):
        a(f"""
        v_xor_b32 v14, {x}, v1
        v_lshlrev_b32 v14, 2, v14
        ds_bpermute_b32 v15, v14, v9
        s_waitcnt lgkmcnt(0)
        v_max_f32 v9, v9, v15
        """)
    a(f"""
    v_mul_f32 v13, v13, v9
    v_sqrt_f32 v13, v13
    s_nop 0
    v_mul_f32 v13, 0xbf802000, v13
    s_mov_b32 s20, 0
    att_restart:
    """)
    for r in range(16):
        a(f"v_mov_b32 v{NEGM + r}, v13")
        a(f"v_mov_b32 v{O + r}, 0")
    a(f"""
    v_mov_b32 v8, v3
    v_mov_b32 v9, v12
    s_mov_b32 s21, 0
    att_chunk:
    s_cmp_lg_u32 s20, 0
    s_cbranch_scc1 att_nobar
    s_cmp_eq_u32 s21, 0
    s_cbranch_scc1 att_w0
    s_cmp_eq_u32 s21, 1
    s_cbranch_scc1 att_w1
    s_cmp_eq_u32 s21, 2
    s_cbranch_scc1 att_w2
    s_waitcnt vmcnt(0)
    s_branch att_bar
    att_w0:
    s_waitcnt vmcnt(12)
    s_branch att_bar
    att_w1:
    s_waitcnt vmcnt(8)
    s_branch att_bar
    att_w2:
    s_waitcnt vmcnt(4)
    att_bar:
    s_barrier
    att_nobar:
    """)
    def rdK(i):
        a(f"ds_read_b128 {vr(KF[i % 2])}, v8 offset:{i * 1024}")
    def rdV(i):
        a(f"""
        s_mov_b64 exec, s[14:15]
        ds_read_b128 {vr(VF[i % 2][0])}, v9 offset:{i * 1024}
        ds_read_b128 {vr(VF[i % 2][1])}, v9 offset:{i * 1024 + 512}
        s_mov_b64 exec, -1
        """)
    def qk(i):
        a(f"v_mfma_f32_32x32x16_bf16 {vr(SB[i % 2], 16)}, {vr(KF[i % 2])}, {vr(Q)}, {vr(NEGM, 16)}")
    NT = 16
    rdK(0); rdK(1); rdV(0)
    a("s_waitcnt lgkmcnt(3)")
    qk(0)
    for i in range(NT):
        s = SB[i % 2]
        if i + 1 < NT:
            a("s_waitcnt lgkmcnt(2)")
            qk(i + 1)
            if i + 2 < NT:
                rdK(i + 2)
        else:
            a.nop(8)
        if i == 0:
            a.nop(10)
        for r in range(8):
            a(f"v_exp_f32 v{s + r}, v{s + r}")
        for r in range(4):
            a(f"v_cvt_pk_bf16_f32 v{P + r}, v{s + 2 * r}, v{s + 2 * r + 1}")
        for r in range(8, 12):
            a(f"v_exp_f32 v{s + r}, v{s + r}")
        a(f"s_waitcnt lgkmcnt({1 if i + 2 < NT else 0})")
        a(f"v_mfma_f32_32x32x16_bf16 {vr(O, 16)}, {vr(VF[i % 2][0])}, {vr(P)}, {vr(O, 16)}")
        for r in range(12, 16):
            a(f"v_exp_f32 v{s + r}, v{s + r}")
        a("s_nop 0")
        for r in range(4, 8):
            a(f"v_cvt_pk_bf16_f32 v{P + r}, v{s + 2 * r}, v{s + 2 * r + 1}")
        if i + 1 < NT:
            rdV(i + 1)
        else:
            a.nop(2)
        a(f"v_mfma_f32_32x32x16_bf16 {vr(O, 16)}, {vr(VF[i % 2][1])}, {vr(P + 4)}, {vr(O, 16)}")
    a(f"""
    v_add_u32 v8, 16384, v8
    v_add_u32 v9, 16384, v9
    s_add_u32 s21, s21, 1
    s_cmp_lt_u32 s21, 4
    s_cbranch_scc1 att_chunk
    """)
    a.nop(16)
    a(f"""
    s_cmp_lg_u32 s20, 0
    s_cbranch_scc1 att_fin
    v_cmp_le_f32 vcc, 0x2b800000, v{O + 8}
    s_nop 4
    s_cmp_eq_u64 vcc, exec
    s_cbranch_scc1 att_fin
    """)
    a(f"""
    s_mov_b32 s20, 1
    v_mov_b32 v8, v3
    v_mov_b32 v13, 0xff800000
    s_mov_b32 s21, 0
    att_mx:
    ds_read_b128 {vr(KF[0])}, v8
    s_waitcnt lgkmcnt(0)
    v_mfma_f32_32x32x16_bf16 {vr(SB[0], 16)}, {vr(KF[0])}, {vr(Q)}, 0
    """)
    a.nop(16)
    for r in range(0, 16, 2):
        a(f"v_max3_f32 v13, v{SB[0] + r}, v{SB[0] + r + 1}, v13")
    a(f"""
    v_add_u32 v8, 1024, v8
    s_add_u32 s21, s21, 1
    s_cmp_lt_u32 s21, 64
    s_cbranch_scc1 att_mx
    v_xor_b32 v14, 32, v1
    v_lshlrev_b32 v14, 2, v14
    ds_bpermute_b32 v15, v14, v13
    s_waitcnt lgkmcnt(0)
    v_max_f32 v13, v13, v15
    v_sub_f32 v13, 0, v13
    s_branch att_restart
    att_fin:
    v_rcp_f32 v13, v{O + 8}
    s_nop 0
    """)
    for r in range(8):
        a(f"v_mul_f32 v{O + r}, v13, v{O + r}")
    for r in range(4):
        a(f"v_cvt_pk_bf16_f32 v{P + r}, v{O + 2 * r}, v{O + 2 * r + 1}")
    a(f"buffer_store_dwordx4 {vr(P)}, v3, s[40:43], s8 offen")
    end(a, name)
    KERNELS.append((name, a.text(), 112, 72))
    return f"; @launch kernel={name} grid=({NWG},1,1) block=(512,1,1) lds=131072"

def resid_epilogue(a, R, X, final):
    T = R + 16
    for r in range(8):
        a(f"v_cvt_pk_bf16_f32 v{T + r}, v{R + 2 * r}, v{R + 2 * r + 1}")
    for r in range(8):
        a(f"""
        v_lshlrev_b32 v{R + 2 * r}, 16, v{T + r}
        v_and_b32 v{R + 2 * r + 1}, 0xffff0000, v{T + r}
        v_lshlrev_b32 v{T + 8}, 16, v{X + r}
        v_and_b32 v{T + 9}, 0xffff0000, v{X + r}
        v_add_f32 v{R + 2 * r}, v{R + 2 * r}, v{T + 8}
        v_add_f32 v{R + 2 * r + 1}, v{R + 2 * r + 1}, v{T + 9}
        """)
    for r in range(8):
        a(f"v_cvt_pk_bf16_f32 v{T + r}, v{R + 2 * r}, v{R + 2 * r + 1}")
    if not final:
        a(f"""
        buffer_store_dwordx4 {vr(T)}, v3, s[40:43], s58 offen
        buffer_store_dwordx4 {vr(T + 4)}, v3, s[40:43], s58 offen offset:1024
        """)
    else:
        srd(a, 44, P_OUT, 2048 * 1024)
        a(f"""
        v_and_b32 v4, 31, v1
        v_lshlrev_b32 v4, 10, v4
        v_lshrrev_b32 v5, 5, v1
        v_lshl_add_u32 v4, v5, 3, v4
        s_lshl_b32 s60, s56, 15
        s_lshl_b32 s61, s57, 6
        s_add_u32 s60, s60, s61
        """)
        for j in range(4):
            a(f"buffer_store_dwordx2 {vr(T + 2 * j, 2)}, v4, s[44:47], s60 offen offset:{j * 16}")

def owner_setup(a, X):
    a(f"""
    s_and_b32 s56, s3, 1
    s_lshl_b32 s60, s5, 1
    s_add_u32 s56, s56, s60
    s_lshr_b32 s57, s3, 1
    s_lshl_b32 s60, s6, 1
    s_add_u32 s57, s57, s60
    s_lshl_b32 s58, s56, 5
    s_lshl_b32 s60, s57, 1
    s_add_u32 s58, s58, s60
    s_lshl_b32 s58, s58, 10
    s_add_u32 s58, s58, {X_F}
    buffer_load_dwordx4 {vr(X)}, v3, s[40:43], s58 offen
    buffer_load_dwordx4 {vr(X + 4)}, v3, s[40:43], s58 offen offset:1024
    """)

def gen_wo():
    a = Asm(); a.uid = "wo"
    name = "wo_kernel"
    NWG = 256
    begin(a, name, NWG)
    VA, VB, ACC, X = 64, 128, 192, 8
    tile_map(a, 2, 5, 6)
    a(f"""
    s_lshl_b32 s8, s6, 16
    s_lshl_b32 s9, s3, 13
    s_add_u32 s8, s8, s9
    s_add_u32 s8, s8, {WO_F}
    s_lshl_b32 s10, s5, 16
    s_add_u32 s10, s10, s9
    s_add_u32 s10, s10, {O_F}
    s_add_u32 s9, s8, 32768
    s_add_u32 s11, s10, 32768
    s_add_u32 s12, s8, 4096
    s_add_u32 s13, s9, 4096
    s_add_u32 s14, s10, 4096
    s_add_u32 s15, s11, 4096
    """)
    for kt in range(8):
        o = (kt % 4) * 1024
        sa = (8, 9) if kt < 4 else (12, 13)
        sb = (10, 11) if kt < 4 else (14, 15)
        a(f"buffer_load_dwordx4 {vr(VA + kt * 8)}, v3, s[40:43], s{sa[0]} offen offset:{o}")
        a(f"buffer_load_dwordx4 {vr(VA + kt * 8 + 4)}, v3, s[40:43], s{sa[1]} offen offset:{o}")
        a(f"buffer_load_dwordx4 {vr(VB + kt * 8)}, v3, s[40:43], s{sb[0]} offen offset:{o}")
        a(f"buffer_load_dwordx4 {vr(VB + kt * 8 + 4)}, v3, s[40:43], s{sb[1]} offen offset:{o}")
    owner_setup(a, X)
    for kt in range(8):
        a(f"s_waitcnt vmcnt({(7 - kt) * 4 + 2})")
        for n in range(2):
            for t in range(2):
                c = vr(ACC + (n * 2 + t) * 16, 16)
                a(f"v_mfma_f32_32x32x16_bf16 {c}, {vr(VA + kt * 8 + n * 4)}, {vr(VB + kt * 8 + t * 4)}, {'0' if kt == 0 else c}")
    a.nop(16)
    reduce4(a, ACC, VA)
    a("s_waitcnt vmcnt(0)")
    resid_epilogue(a, VA, X, False)
    end(a, name)
    KERNELS.append((name, a.text(), 256, 72))
    return f"; @launch kernel={name} grid=({NWG},1,1) block=(256,1,1) lds={RED_LDS + 65536}"

def gen_ffn1():
    a = Asm(); a.uid = "f1"
    name = "ffn1_kernel"
    NWG = 256
    begin(a, name, NWG)
    VA, ACC, CS, BB = 64, 192, 32, 16
    SL = 65536
    tile_map(a, 2, 5, 6)
    a(f"""
    s_lshl_b32 s8, s5, 16
    s_lshl_b32 s9, s3, 13
    s_add_u32 s8, s8, s9
    s_add_u32 s8, s8, {X_F}
    s_mov_b32 m0, s9
    s_add_u32 s10, s8, 4096
    """)
    for i in range(4):
        a(f"buffer_load_dwordx4 v3, s[40:43], s8 offen offset:{i * 1024} lds")
    a("s_add_u32 m0, s9, 4096\ns_nop 0")
    for i in range(4):
        a(f"buffer_load_dwordx4 v3, s[40:43], s10 offen offset:{i * 1024} lds")
    a(f"""
    s_cmp_eq_u32 s3, 7
    s_cbranch_scc1 f1_stats
    s_mul_i32 s11, s6, 7
    s_add_u32 s11, s11, s3
    s_lshl_b32 s12, s11, 15
    s_add_u32 s12, s12, {W1_F}
    """)
    for kt in range(32):
        a(f"buffer_load_dwordx4 {vr(VA + kt * 4)}, v3, s[40:43], s12 offen offset:{(kt % 4) * 1024}")
        if kt % 4 == 3 and kt != 31:
            a("s_add_u32 s12, s12, 4096")
    a(f"""
    v_lshrrev_b32 v4, 5, v1
    v_lshlrev_b32 v4, 4, v4
    s_lshl_b32 s60, s11, 7
    s_add_u32 s60, s60, {CS1}
    """)
    for j in range(4):
        a(f"buffer_load_dwordx4 {vr(CS + j * 4)}, v4, s[40:43], s60 offen offset:{j * 32}")
    a("s_waitcnt vmcnt(36)\ns_barrier")
    bufs = (BB, 48)
    def rdB(kt):
        b = bufs[kt % 2]
        a(f"ds_read_b128 {vr(b)}, v3 offset:{kt * 1024}")
        a(f"ds_read_b128 {vr(b + 4)}, v3 offset:{32768 + kt * 1024}")
    rdB(0)
    for kt in range(32):
        if kt + 1 < 32:
            rdB(kt + 1)
            a(f"s_waitcnt vmcnt({31 - kt + 4}) lgkmcnt(2)")
        else:
            a(f"s_waitcnt vmcnt(4) lgkmcnt(0)")
        b = bufs[kt % 2]
        for t in range(2):
            c = vr(ACC + t * 16, 16)
            a(f"v_mfma_f32_32x32x16_bf16 {c}, {vr(VA + kt * 4)}, {vr(b + t * 4)}, {'0' if kt == 0 else c}")
    a(f"""
    s_waitcnt vmcnt(0)
    s_barrier
    v_and_b32 v5, 31, v1
    v_lshlrev_b32 v5, 3, v5
    v_add_u32 v5, {SL}, v5
    ds_read_b64 v[8:9], v5
    ds_read_b64 v[10:11], v5 offset:256
    s_waitcnt lgkmcnt(0)
    """)
    a.nop(8)
    for t in range(2):
        for r in range(16):
            c = ACC + t * 16 + r
            a(f"v_fma_f32 v{c}, -v{8 + 2 * t}, v{CS + r}, v{c}")
            a(f"v_mul_f32 v{c}, v{9 + 2 * t}, v{c}")
            a(f"v_max_f32 v{c}, 0, v{c}")
        for r in range(8):
            a(f"v_cvt_pk_bf16_f32 v{VA + t * 8 + r}, v{ACC + t * 16 + 2 * r}, v{ACC + t * 16 + 2 * r + 1}")
    a(f"""
    s_mul_i32 s12, s5, 224
    s_lshl_b32 s13, s11, 1
    s_add_u32 s12, s12, s13
    s_lshl_b32 s12, s12, 10
    s_add_u32 s12, s12, {H_F}
    s_add_u32 s13, s12, {112 * 1024}
    buffer_store_dwordx4 {vr(VA)}, v3, s[40:43], s12 offen
    buffer_store_dwordx4 {vr(VA + 4)}, v3, s[40:43], s12 offen offset:1024
    buffer_store_dwordx4 {vr(VA + 8)}, v3, s[40:43], s13 offen
    buffer_store_dwordx4 {vr(VA + 12)}, v3, s[40:43], s13 offen offset:1024
    s_endpgm
    f1_stats:
    s_mov_b32 s50, 0x3f803f80
    v_mov_b32 v8, 0
    v_mov_b32 v9, 0
    v_mov_b32 v10, 0
    v_mov_b32 v11, 0
    s_waitcnt vmcnt(0)
    s_barrier
    """)
    for g in range(8):
        t = g // 4
        for i in range(8):
            a(f"ds_read_b128 {vr(VA + i * 4)}, v3 offset:{(g * 8 + i) * 1024}")
        for i in range(8):
            a(f"s_waitcnt lgkmcnt({7 - i})")
            for r in range(4):
                b = VA + i * 4 + r
                a(f"v_dot2_f32_bf16 v{8 + 2 * t}, v{b}, s50, v{8 + 2 * t}")
                a(f"v_dot2_f32_bf16 v{9 + 2 * t}, v{b}, v{b}, v{9 + 2 * t}")
    a.nop(4)
    a(f"""
    v_xor_b32 v14, 32, v1
    v_lshlrev_b32 v14, 2, v14
    ds_bpermute_b32 v16, v14, v8
    ds_bpermute_b32 v17, v14, v9
    ds_bpermute_b32 v18, v14, v10
    ds_bpermute_b32 v19, v14, v11
    s_waitcnt lgkmcnt(0)
    v_add_f32 v8, v8, v16
    v_add_f32 v9, v9, v17
    v_add_f32 v10, v10, v18
    v_add_f32 v11, v11, v19
    """)
    stats_finish(a, 8, 9, 20, 21, 16, 17)
    stats_finish(a, 10, 11, 22, 23, 16, 17)
    a(f"""
    v_and_b32 v5, 31, v1
    v_lshlrev_b32 v5, 3, v5
    v_add_u32 v5, {SL}, v5
    ds_write_b64 v5, v[20:21]
    ds_write_b64 v5, v[22:23] offset:256
    s_waitcnt lgkmcnt(0)
    s_barrier
    """)
    end(a, name)
    KERNELS.append((name, a.text(), 224, 72))
    return f"; @launch kernel={name} grid=({NWG},1,1) block=(512,1,1) lds={SL + 512}"

def gen_ffn2(final):
    a = Asm(); a.uid = "f2b" if final else "f2a"
    name = "ffn2b_kernel" if final else "ffn2a_kernel"
    NWG = 256
    begin(a, name, NWG)
    BUF, ACC, X = 64, 192, 8
    D = 7
    tile_map(a, 2, 5, 6)
    a(f"""
    s_mul_i32 s9, s3, {28 * 1024}
    s_mul_i32 s8, s6, {224 * 1024}
    s_add_u32 s8, s8, s9
    s_add_u32 s8, s8, {W2_F}
    s_mul_i32 s10, s5, {224 * 1024}
    s_add_u32 s10, s10, s9
    s_add_u32 s10, s10, {H_F}
    s_add_u32 s9, s8, {112 * 1024}
    s_add_u32 s11, s10, {112 * 1024}
    """)
    def load(k):
        b = BUF + (k % D) * 16
        o = (k % 4) * 1024
        for i, s in enumerate((8, 9, 10, 11)):
            a(f"buffer_load_dwordx4 {vr(b + i * 4)}, v3, s[40:43], s{s} offen offset:{o}")
        if k % 4 == 3:
            a("s_add_u32 s8, s8, 4096\ns_add_u32 s9, s9, 4096\ns_add_u32 s10, s10, 4096\ns_add_u32 s11, s11, 4096")
    owner_setup(a, X)
    for k in range(D):
        load(k)
    for k in range(28):
        outstanding_after = min(D - 1, 27 - k) * 4
        a(f"s_waitcnt vmcnt({outstanding_after})")
        b = BUF + (k % D) * 16
        for n in range(2):
            for t in range(2):
                c = vr(ACC + (n * 2 + t) * 16, 16)
                a(f"v_mfma_f32_32x32x16_bf16 {c}, {vr(b + n * 4)}, {vr(b + 8 + t * 4)}, {'0' if k == 0 else c}")
        if k + D < 28:
            load(k + D)
    a.nop(16)
    reduce4(a, ACC, 64)
    resid_epilogue(a, 64, X, final)
    end(a, name)
    KERNELS.append((name, a.text(), 256, 72))
    return f"; @launch kernel={name} grid=({NWG},1,1) block=(256,1,1) lds={RED_LDS + 65536}"

def main():
    lp = gen_prep()
    lq = gen_qkv()
    la = gen_att()
    lw = gen_wo()
    l1 = gen_ffn1()
    l2a = gen_ffn2(False)
    l2b = gen_ffn2(True)
    launches = [lp, lq, la, lw, l1, l2a, lq, la, lw, l1, l2b]
    if len(sys.argv) > 1:
        launches = launches[:int(sys.argv[1])]
    hdr = open("interleave_layers__grouped_kv_mqa__dense_activation_relu__prompt.s.ref").read().split("; Override launch")[0]
    s = hdr + "\n".join(launches) + "\n"
    s += '.amdgcn_target "amdgcn-amd-amdhsa--gfx950"\n.text\n'
    for n, t, nv, ns in KERNELS:
        s += f".globl {n}\n.type {n},@function\n" + t
    s += '.section .rodata,"a"\n'
    for n, t, nv, ns in KERNELS:
        s += f""".p2align 6
.amdhsa_kernel {n}
  .amdhsa_next_free_vgpr {nv}
  .amdhsa_next_free_sgpr {ns}
  .amdhsa_accum_offset {(nv + 3) // 4 * 4}
  .amdhsa_group_segment_fixed_size 0
  .amdhsa_kernarg_size 88
  .amdhsa_user_sgpr_count 2
  .amdhsa_user_sgpr_kernarg_segment_ptr 1
  .amdhsa_system_sgpr_workgroup_id_x 1
.end_amdhsa_kernel
"""
    open(OUT, "w").write(s)

if __name__ == "__main__":
    main()
```

```python
import sys, os

OUT = os.environ.get("OUTS", "interleave_layers__grouped_kv_mqa__dense_activation_relu__prompt.s")
INSTR = os.environ.get("INSTR", "0") == "1"
INSTR_WG = int(os.environ.get("INSTR_WG", "0"))
INSTR_WAVE = int(os.environ.get("INSTR_WAVE", "0"))

KB = 1024
WQ_F = 0
WKV_F = WQ_F + 512 * KB
WO_F = WKV_F + 32 * KB
W1_F = WO_F + 512 * KB
W2_F = W1_F + 1792 * KB
CSQ = W2_F + 1792 * KB
CSKV = CSQ + 2 * KB
CS1 = CSKV + 1 * KB
KN2 = CS1 + 8 * KB
FLAGS = KN2 + 1 * KB
X0_F = (FLAGS + 32 * KB + 4095) // 4096 * 4096
X1_F = X0_F + 2048 * KB
X2_F = X1_F + 2048 * KB
X3_F = X2_F + 2048 * KB
Q_F = X3_F + 2048 * KB
K_F = Q_F + 4096 * KB
VSTEP = 544
VT_SZ = 128 * VSTEP
VT_F = K_F + 128 * KB
O_F = VT_F + 136 * KB
H_F = O_F + 4096 * KB
WS_END = H_F + 2 * 7168 * KB

class Asm:
    def __init__(self, uid):
        self.lines = []
        self.uid = uid
        self.n = 0
    def __call__(self, s):
        for l in s.strip("\n").split("\n"):
            l = l.strip()
            if not l: continue
            self.lines.append(l if l.endswith(":") else "    " + l)
    def nop(self, n):
        while n > 0:
            k = min(n, 16)
            self(f"s_nop {k-1}")
            n -= k
    def lab(self, s):
        self.n += 1
        return f"L{self.uid}_{s}_{self.n}"
    def text(self):
        return "\n".join(self.lines) + "\n"

def vr(a, n=4):
    return f"v[{a}:{a+n-1}]"

KERNELS = []
P_X, P_WQ, P_WK, P_WV, P_WO, P_BX, P_W1, P_W2, P_OUT, P_DBG, P_WS = 16, 18, 20, 22, 24, 26, 28, 30, 32, 34, 36

NSTAMP = 16
DETAIL = os.environ.get("DETAIL", "")
def dstamp(a, ph, i):
    if INSTR and DETAIL == ph:
        a(f"s_memtime s[74:75]\ns_waitcnt lgkmcnt(0)\ns_mov_b32 s{80+i}, s74")
def stamp(a, i):
    if not INSTR or DETAIL: return
    a(f"s_memtime s[74:75]\ns_waitcnt lgkmcnt(0)\ns_mov_b32 s{80+i}, s74")

def stamp_flush(a, n):
    if not INSTR: return
    lab = a.lab("sf")
    a(f"""
    s_cmp_lg_u32 s2, {INSTR_WG}
    s_cbranch_scc1 {lab}
    s_cmp_lg_u32 s3, {INSTR_WAVE}
    s_cbranch_scc1 {lab}
    s_mov_b32 s76, s34
    s_and_b32 s77, s35, 0xffff
    s_mov_b32 s78, 256
    s_mov_b32 s79, 0x00020000
    s_mov_b64 exec, 1
    v_mov_b32 v2, 0
    """)
    for i in range(n):
        a(f"s_sub_u32 s74, s{80+i}, s72\nv_mov_b32 v0, s74\nbuffer_store_dword v0, v2, s[76:79], 0 offen offset:{4*i}\ns_nop 1")
    a(f"s_waitcnt vmcnt(0)\n{lab}:")

def begin(a, name, nwg):
    a(f".p2align 8\n{name}:")
    a(f"""
    s_cmp_ge_u32 s2, {nwg}
    s_cbranch_scc1 {name}_exit
    s_load_dwordx16 s[16:31], s[0:1], 0
    s_load_dwordx4 s[32:35], s[0:1], 64
    s_load_dwordx2 s[36:37], s[0:1], 80
    v_lshrrev_b32 v2, 6, v0
    v_and_b32 v1, 63, v0
    v_readfirstlane_b32 s3, v2
    v_lshlrev_b32 v3, 4, v1
    s_waitcnt lgkmcnt(0)
    s_mov_b32 s40, s36
    s_and_b32 s41, s37, 0xffff
    s_mov_b32 s42, {WS_END}
    s_mov_b32 s43, 0x00020000
    """)
    if INSTR:
        a("s_memtime s[74:75]\ns_waitcnt lgkmcnt(0)\ns_mov_b32 s72, s74")

def end(a, name):
    a(f"{name}_exit:\ns_endpgm")

def srd(a, d, sp, nbytes):
    a(f"""
    s_mov_b32 s{d}, s{sp}
    s_and_b32 s{d+1}, s{sp+1}, 0xffff
    s_mov_b32 s{d+2}, {nbytes}
    s_mov_b32 s{d+3}, 0x00020000
    """)

def bf16r(a, d, s):
    a(f"v_cvt_pk_bf16_f32 v{d}, v{s}, v{s}\nv_lshlrev_b32 v{d}, 16, v{d}")

def stats_finish(a, s1, s2, vm, vr_, t0, t1):
    a(f"""
    v_mul_f32 v{t0}, 0x3b000000, v{s1}
    v_mul_f32 v{t1}, 0x3b000000, v{s2}
    v_fma_f32 v{t1}, -v{t0}, v{t0}, v{t1}
    v_max_f32 v{t1}, 0, v{t1}
    """)
    bf16r(a, vm, t0)
    bf16r(a, t1, t1)
    a(f"v_add_f32 v{t1}, 0x3727c5ac, v{t1}")
    bf16r(a, t1, t1)
    a(f"v_sqrt_f32 v{t1}, v{t1}\ns_nop 0")
    bf16r(a, t1, t1)
    a(f"v_rcp_f32 v{vr_}, v{t1}\ns_nop 0")

def gen_prep():
    a = Asm("prep")
    name = "prep_kernel"
    B_Q, B_KV, B_1, B_O, B_2, B_Z = 64, 80, 81, 137, 169, 281
    NWG = 282
    begin(a, name, NWG)
    a(f"""
    v_and_b32 v4, 31, v1
    v_lshrrev_b32 v5, 5, v1
    s_mov_b32 s50, 0x3f803f80
    s_cmp_ge_u32 s2, {B_Z}
    s_cbranch_scc1 prep_z
    s_cmp_ge_u32 s2, {B_2}
    s_cbranch_scc1 prep_w2
    s_cmp_ge_u32 s2, {B_O}
    s_cbranch_scc1 prep_wo
    s_cmp_ge_u32 s2, {B_1}
    s_cbranch_scc1 prep_w1
    s_cmp_ge_u32 s2, {B_KV}
    s_cbranch_scc1 prep_kv
    s_cmp_ge_u32 s2, {B_Q}
    s_cbranch_scc1 prep_wq
    """)
    srd(a, 44, P_X, 2048 * 1024)
    a(f"""
    s_lshl_b32 s4, s2, 2
    s_add_u32 s4, s4, s3
    s_lshr_b32 s6, s4, 2
    s_and_b32 s7, s4, 3
    v_lshlrev_b32 v6, 10, v4
    v_lshl_add_u32 v6, v5, 3, v6
    s_lshl_b32 s9, s6, 15
    s_lshl_b32 s10, s7, 8
    s_add_u32 s9, s9, s10
    s_lshl_b32 s8, s4, 13
    s_add_u32 s8, s8, {X0_F}
    s_add_u32 s10, s8, 4096
    """)
    for t in range(8):
        a(f"buffer_load_dwordx2 {vr(8 + t * 4, 2)}, v6, s[44:47], s9 offen offset:{t * 32}")
        a(f"buffer_load_dwordx2 {vr(10 + t * 4, 2)}, v6, s[44:47], s9 offen offset:{t * 32 + 16}")
    for t in range(8):
        a(f"s_waitcnt vmcnt({(7 - t) * 2 + t})")
        a(f"buffer_store_dwordx4 {vr(8 + t * 4)}, v3, s[40:43], s{8 if t < 4 else 10} offen offset:{(t % 4) * 1024}")
    a("s_endpgm")
    a("prep_wq:")
    srd(a, 44, P_WQ, 512 * 1024)
    a(f"""
    s_sub_u32 s6, s2, {B_Q}
    s_mov_b32 s5, 1024
    s_mov_b32 s8, {WQ_F}
    s_mov_b32 s12, {CSQ}
    s_branch prep_ngo
    prep_w1:
    """)
    srd(a, 44, P_W1, 512 * 3584)
    a(f"""
    s_sub_u32 s6, s2, {B_1}
    s_mov_b32 s5, 3584
    s_mov_b32 s8, {W1_F}
    s_mov_b32 s12, {CS1}
    prep_ngo:
    s_lshl_b32 s9, s6, 15
    s_add_u32 s8, s8, s9
    s_lshl_b32 s9, s3, 13
    s_add_u32 s8, s8, s9
    s_lshl_b32 s9, s6, 7
    s_add_u32 s12, s12, s9
    s_lshl_b32 s9, s5, 2
    v_mul_u32_u24 v6, s9, v5
    v_lshl_add_u32 v6, v4, 1, v6
    s_lshl_b32 s9, s3, 7
    s_mul_i32 s9, s9, s5
    s_lshl_b32 s10, s6, 6
    s_add_u32 s9, s9, s10
    s_mul_i32 s11, s5, 5
    """)
    for t in range(8):
        for e in range(8):
            a(f"buffer_load_ushort v{48 + t * 8 + e}, v6, s[44:47], s9 offen")
            a("s_add_u32 s9, s9, s11" if e in (3, 7) else "s_add_u32 s9, s9, s5")
    a("prep_npack:")
    a("s_add_u32 s10, s8, 4096\nv_mov_b32 v7, 0")
    for t in range(8):
        a(f"s_waitcnt vmcnt({min(63, (7 - t) * 8 + t)})")
        for r in range(4):
            a(f"v_lshl_or_b32 v{8 + t * 4 + r}, v{48 + t * 8 + 2 * r + 1}, 16, v{48 + t * 8 + 2 * r}")
        a(f"buffer_store_dwordx4 {vr(8 + t * 4)}, v3, s[40:43], s{8 if t < 4 else 10} offen offset:{(t % 4) * 1024}")
        for r in range(4):
            a(f"v_dot2_f32_bf16 v7, v{8 + t * 4 + r}, s50, v7")
    a(f"""
    s_nop 3
    v_lshlrev_b32 v6, 2, v0
    ds_write_b32 v6, v7
    s_waitcnt lgkmcnt(0)
    s_barrier
    s_cmp_lg_u32 s3, 0
    s_cbranch_scc1 {name}_exit
    v_lshlrev_b32 v6, 2, v4
    """)
    for i in range(8):
        a(f"ds_read_b32 v{8 + i}, v6 offset:{i * 128}")
    a("s_waitcnt lgkmcnt(0)")
    for i in range(1, 8):
        a(f"v_add_f32 v8, v8, v{8 + i}")
    a(f"""
    buffer_store_dword v8, v6, s[40:43], s12 offen
    s_endpgm
    """)
    a("prep_kv:")
    srd(a, 44, P_WK, 512 * 32)
    srd(a, 52, P_WV, 512 * 32)
    a(f"""
    s_lshl_b32 s8, s3, 13
    s_add_u32 s8, s8, {WKV_F}
    s_mov_b32 s12, {CSKV}
    v_and_b32 v6, 15, v1
    v_lshlrev_b32 v6, 1, v6
    v_lshl_add_u32 v6, v5, 7, v6
    s_lshl_b32 s9, s3, 12
    v_cmp_gt_u32 vcc, 16, v4
    s_mov_b64 s[14:15], vcc
    s_not_b64 s[56:57], vcc
    """)
    for half, (m, sr) in enumerate(((14, 44), (56, 52))):
        a(f"s_mov_b64 exec, s[{m}:{m+1}]")
        for t in range(8):
            for e in range(8):
                row = t * 16 + (e & 3) + (e >> 2) * 8
                a(f"buffer_load_ushort v{48 + t * 8 + e}, v6, s[{sr}:{sr+3}], s9 offen offset:{row * 32}")
    a("s_mov_b64 exec, -1\ns_waitcnt vmcnt(0)\ns_branch prep_npack")
    a("prep_wo:")
    srd(a, 44, P_WO, 512 * 1024)
    a(f"""
    s_sub_u32 s4, s2, {B_O}
    s_lshl_b32 s4, s4, 2
    s_add_u32 s4, s4, s3
    s_mov_b32 s8, {WO_F}
    s_lshr_b32 s6, s4, 3
    s_and_b32 s7, s4, 7
    s_branch prep_wgo
    prep_w2:
    """)
    srd(a, 44, P_W2, 1792 * 1024)
    a(f"""
    s_sub_u32 s4, s2, {B_2}
    s_lshl_b32 s4, s4, 2
    s_add_u32 s4, s4, s3
    s_mov_b32 s8, {W2_F}
    s_mov_b32 s9, 153391690
    s_mul_hi_u32 s6, s4, s9
    s_mul_i32 s9, s6, 28
    s_sub_u32 s7, s4, s9
    prep_wgo:
    s_lshl_b32 s9, s4, 12
    s_add_u32 s8, s8, s9
    v_lshlrev_b32 v6, 12, v5
    v_lshl_add_u32 v6, v4, 1, v6
    s_lshl_b32 s9, s7, 16
    s_lshl_b32 s10, s6, 6
    s_add_u32 s9, s9, s10
    """)
    for t in range(4):
        for e in range(8):
            row = (e & 3) + (e >> 2) * 8
            if row < 4:
                a(f"buffer_load_ushort v{48 + t * 8 + e}, v6, s[44:47], s9 offen offset:{row * 1024}")
            else:
                if e == 4:
                    a("s_add_u32 s10, s9, 8192")
                a(f"buffer_load_ushort v{48 + t * 8 + e}, v6, s[44:47], s10 offen offset:{(row - 8) * 1024}")
        a("s_add_u32 s9, s9, 16384")
    for t in range(4):
        a(f"s_waitcnt vmcnt({(3 - t) * 8 + t})")
        for r in range(4):
            a(f"v_lshl_or_b32 v{8 + t * 4 + r}, v{48 + t * 8 + 2 * r + 1}, 16, v{48 + t * 8 + 2 * r}")
        a(f"buffer_store_dwordx4 {vr(8 + t * 4)}, v3, s[40:43], s8 offen offset:{t * 1024}")
    a("s_endpgm")
    a(f"""
    prep_z:
    v_mov_b32 v8, 0
    v_mov_b32 v9, 0
    v_mov_b32 v10, 0
    v_mov_b32 v11, 0
    s_lshl_b32 s8, s3, 13
    s_add_u32 s8, s8, {FLAGS}
    s_add_u32 s9, s8, 4096
    """)
    for i in range(4):
        a(f"buffer_store_dwordx4 v[8:11], v3, s[40:43], s8 offen offset:{i * 1024}")
        a(f"buffer_store_dwordx4 v[8:11], v3, s[40:43], s9 offen offset:{i * 1024}")
    end(a, name)
    KERNELS.append((name, a.text(), 112, 64))
    return f"; @launch kernel={name} grid=({NWG},1,1) block=(256,1,1) lds=4096"

ACC = 16
R_WOA = 112
R_W1A = 144
R_W1B = 80
R_W2A0 = 96
R_W2A1 = 144
R_WQA = 96
R_WKV = 128
LDS_RED = 0
LDS_STAT = 135168
LDS_TOTAL = 135168 + 8192 + 4096

def w1reg(kt):
    return R_W1A + kt * 4 if kt < 28 else R_W1B + (kt - 28) * 4
def w2reg(f):
    return R_W2A0 + f * 4 if f < 12 else R_W2A1 + (f - 12) * 4

def group_map(a):
    a(f"""
    s_and_b32 s60, s2, 7
    s_lshr_b32 s61, s2, 3
    s_lshl_b32 s5, s60, 2
    s_lshr_b32 s62, s61, 3
    s_add_u32 s5, s5, s62
    s_and_b32 s6, s61, 7
    s_mov_b32 s50, 0x3f803f80
    """)
    a(f"""
    s_lshl_b32 s60, s6, 16
    s_lshl_b32 s61, s3, 12
    s_add_u32 s60, s60, s61
    s_add_u32 s44, s60, {WO_F}
    s_add_u32 s47, s60, {WQ_F}
    s_min_u32 s51, s3, 6
    s_mul_i32 s60, s6, 7
    s_add_u32 s51, s51, s60
    s_lshl_b32 s45, s51, 15
    s_add_u32 s45, s45, {W1_F}
    s_mul_i32 s60, s6, {224 * KB}
    s_mul_i32 s61, s3, {14 * KB}
    s_add_u32 s46, s60, s61
    s_add_u32 s46, s46, {W2_F}
    """)

def pf_wo(a, i):
    n, k = i >> 2, i & 3
    if n == 1:
        a(f"s_add_u32 s60, s44, 32768\nbuffer_load_dwordx4 {vr(R_WOA + i * 4)}, v3, s[40:43], s60 offen offset:{k * 1024}")
    else:
        a(f"buffer_load_dwordx4 {vr(R_WOA + i * 4)}, v3, s[40:43], s44 offen offset:{k * 1024}")
def pf_w1(a, kt):
    a(f"s_add_u32 s60, s45, {(kt // 4) * 4096}\nbuffer_load_dwordx4 {vr(w1reg(kt))}, v3, s[40:43], s60 offen offset:{(kt % 4) * 1024}")
def pf_w2(a, f):
    k, n = f >> 1, f & 1
    a(f"s_add_u32 s60, s46, {n * 112 * KB + (k // 4) * 4096}\nbuffer_load_dwordx4 {vr(w2reg(f))}, v3, s[40:43], s60 offen offset:{(k % 4) * 1024}")
def pf_wq(a, i):
    n, k = i >> 2, i & 3
    a(f"s_add_u32 s60, s47, {n * 32768}\nbuffer_load_dwordx4 {vr(R_WQA + i * 4)}, v3, s[40:43], s60 offen offset:{k * 1024}")
def pf_wkv(a, k):
    a(f"s_lshl_b32 s60, s3, 12\ns_add_u32 s60, s60, {WKV_F}\nbuffer_load_dwordx4 {vr(R_WKV + k * 4)}, v3, s[40:43], s60 offen offset:{k * 1024}")

def warm(a, sbase, off, nlines):
    a(f"s_add_u32 s60, s{sbase}, {off}\nbuffer_load_dword v101, v100, s[40:43], s60 offen")

def signal(a, layer, phase):
    lab = a.lab("sig")
    a(f"""
    s_waitcnt vmcnt(0)
    s_barrier
    s_cmp_lg_u32 s3, 7
    s_cbranch_scc1 {lab}
    s_lshl_b32 s60, s5, 7
    s_add_u32 s60, s60, {FLAGS + (layer * 4 + phase) * 4096}
    v_mov_b32 v4, 1
    v_mov_b32 v5, 0
    s_mov_b64 exec, 1
    buffer_atomic_add v4, v5, s[40:43], s60 offen
    s_mov_b64 exec, -1
    {lab}:
    """)

def wait_flag(a, layer, phase):
    lab, lp, ld = a.lab("wf"), a.lab("wp"), a.lab("wd")
    a(f"""
    s_cmp_lg_u32 s3, 7
    s_cbranch_scc1 {lab}
    s_lshl_b32 s60, s5, 7
    s_add_u32 s60, s60, {FLAGS + (layer * 4 + phase) * 4096}
    v_mov_b32 v5, 0
    s_mov_b32 s61, 0
    s_mov_b64 exec, 1
    {lp}:
    buffer_load_dword v4, v5, s[40:43], s60 offen sc1
    s_waitcnt vmcnt(0)
    v_readfirstlane_b32 s62, v4
    s_cmp_ge_u32 s62, 8
    s_cbranch_scc1 {ld}
    s_add_u32 s61, s61, 1
    s_cmp_ge_u32 s61, 0x400000
    s_cbranch_scc1 {ld}
    s_sleep 1
    s_branch {lp}
    {ld}:
    s_mov_b64 exec, -1
    {lab}:
    s_barrier
    """)

def reduce8_write(a, nslots=8):
    a(f"""
    s_lshl_b32 s60, s3, 14
    v_add_u32 v0, s60, v3
    """)
    for s in range(8):
        l1, l2 = a.lab("rw"), a.lab("rx")
        a(f"s_cmp_eq_u32 s3, {s}\ns_cbranch_scc1 {l1}")
        for g in range(2):
            a(f"ds_write_b128 v0, {vr(ACC + s * 8 + g * 4)} offset:{LDS_RED + s * 2048 + g * 1024}")
        a(f"s_branch {l2}\n{l1}:")
        for r in range(8):
            a(f"v_mov_b32 v{4 + r}, v{ACC + s * 8 + r}")
        a(f"{l2}:")

def reduce8_read(a, mid=()):
    a(f"""
    s_lshl_b32 s60, s3, 11
    v_add_u32 v0, s60, v3
    """)
    for d in range(1, 8):
        a(f"""
        s_add_u32 s61, s3, {d}
        s_and_b32 s61, s61, 7
        s_lshl_b32 s61, s61, 14
        v_add_u32 v2, s61, v0
        ds_read_b128 {vr(ACC + (d - 1) * 8)}, v2 offset:{LDS_RED}
        ds_read_b128 {vr(ACC + (d - 1) * 8 + 4)}, v2 offset:{LDS_RED + 1024}
        """)
    for f in mid:
        f(a)
    for d in range(1, 8):
        a(f"s_waitcnt lgkmcnt({(7 - d) * 2})")
        for r in range(8):
            a(f"v_add_f32 v{4 + r}, v{4 + r}, v{ACC + (d - 1) * 8 + r}")

def owner_frag_off(a, sdst, base):
    a(f"""
    s_lshr_b32 s60, s3, 1
    s_and_b32 s56, s60, 1
    s_lshl_b32 s61, s5, 1
    s_add_u32 s56, s56, s61
    s_lshr_b32 s57, s3, 2
    s_lshl_b32 s61, s6, 1
    s_add_u32 s57, s57, s61
    s_lshl_b32 s57, s57, 1
    s_and_b32 s61, s3, 1
    s_add_u32 s57, s57, s61
    s_lshl_b32 s{sdst}, s56, 5
    s_add_u32 s{sdst}, s{sdst}, s57
    s_lshl_b32 s{sdst}, s{sdst}, 10
    s_add_u32 s{sdst}, s{sdst}, {base}
    """)

def resid_epilogue(a, X, sdst, final):
    T = ACC
    for r in range(4):
        a(f"v_cvt_pk_bf16_f32 v{T + r}, v{4 + 2 * r}, v{5 + 2 * r}")
    for r in range(4):
        a(f"""
        v_lshlrev_b32 v{4 + 2 * r}, 16, v{T + r}
        v_and_b32 v{5 + 2 * r}, 0xffff0000, v{T + r}
        v_lshlrev_b32 v{T + 8}, 16, v{X + r}
        v_and_b32 v{T + 9}, 0xffff0000, v{X + r}
        v_add_f32 v{4 + 2 * r}, v{4 + 2 * r}, v{T + 8}
        v_add_f32 v{5 + 2 * r}, v{5 + 2 * r}, v{T + 9}
        """)
    for r in range(4):
        a(f"v_cvt_pk_bf16_f32 v{T + r}, v{4 + 2 * r}, v{5 + 2 * r}")
    if not final:
        a(f"buffer_store_dwordx4 {vr(T)}, v3, s[40:43], s{sdst} offen sc1")
    else:
        srd(a, 64, P_OUT, 2048 * 1024)
        a(f"""
        v_and_b32 v0, 31, v1
        v_lshlrev_b32 v0, 10, v0
        v_lshrrev_b32 v2, 5, v1
        v_lshl_add_u32 v0, v2, 3, v0
        s_lshl_b32 s60, s56, 15
        s_lshl_b32 s61, s57, 5
        s_add_u32 s60, s60, s61
        buffer_store_dwordx2 {vr(T, 2)}, v0, s[64:67], s60 offen
        buffer_store_dwordx2 {vr(T + 2, 2)}, v0, s[64:67], s60 offen offset:16
        """)

def phase_att(a, layer, prefetch):
    Q, O = 16, 20
    SB = (36, 52)
    P = 68
    KF = (76, 80)
    VF = ((84, 88), (92, 96))
    LK, LV = 0, 65536
    qf, kf, vf, of, kn = Q_F + layer * 2048 * KB, K_F + layer * 64 * KB, VT_F + layer * VT_SZ, O_F + layer * 2048 * KB, KN2 + layer * 256
    a(f"""
    s_add_u32 s60, s36, {kn}
    s_addc_u32 s61, s37, 0
    s_load_dwordx16 s[64:79], s[60:61], 0
    s_load_dwordx16 s[80:95], s[60:61], 64
    s_and_b32 s7, s3, 1
    s_lshl_b32 s8, s5, 1
    s_add_u32 s8, s8, s7
    s_lshr_b32 s9, s3, 1
    s_lshl_b32 s10, s6, 2
    s_add_u32 s9, s9, s10
    s_lshl_b32 s8, s8, 5
    s_add_u32 s8, s8, s9
    s_lshl_b32 s8, s8, 10
    s_add_u32 s9, s8, {qf}
    s_add_u32 s8, s8, {of}
    buffer_load_dwordx4 {vr(Q)}, v3, s[40:43], s9 offen
    s_lshl_b32 s10, s3, 10
    """)
    def dma_k(c):
        a(f"""
        s_add_u32 m0, s10, {LK + c * 8192}
        s_add_u32 s14, s10, {kf + c * 8192}
        buffer_load_dwordx4 v3, s[40:43], s14 offen lds
        """)
    def dma_v(cp, j):
        if j < 2:
            a(f"""
            s_add_u32 m0, s10, {LV + cp * 17408 + j * 8192}
            s_add_u32 s14, s10, {vf + cp * 17408 + j * 8192}
            buffer_load_dwordx4 v3, s[40:43], s14 offen lds
            """)
        else:
            a(f"""
            s_mov_b32 m0, {LV + cp * 17408 + 16384}
            s_mov_b32 s14, {vf + cp * 17408 + 16384}
            buffer_load_dwordx4 v3, s[40:43], s14 offen lds
            """)
    vm = []
    def issue_group(g):
        cp = g // 2
        dma_k(g); vm.append(("g", g))
        if g % 2 == 0:
            dma_v(cp, 0); vm.append(("g", g))
            dma_v(cp, 1); vm.append(("g", g))
        else:
            dma_v(cp, 2); vm.append(("g", g))
    issue_group(0)
    issue_group(1)
    a(f"""
    v_and_b32 v10, 31, v1
    v_lshrrev_b32 v12, 5, v1
    v_lshl_add_u32 v12, v12, 4, v10
    v_lshlrev_b32 v12, 4, v12
    v_mov_b32 v11, 528
    v_cmp_eq_u32 vcc, 16, v10
    v_cmp_eq_u32 s[12:13], 20, v10
    s_or_b64 s[12:13], vcc, s[12:13]
    v_mov_b32 v13, 512
    s_nop 1
    v_cndmask_b32 v11, v11, v13, s[12:13]
    v_cmp_gt_u32 vcc, 16, v10
    s_nop 1
    v_cndmask_b32 v12, v11, v12, vcc
    v_add_u32 v12, {LV}, v12
    s_waitcnt lgkmcnt(0)
    """)
    for i in range(1, 32):
        a(f"s_max_u32 s64, s64, s{64 + i}")
    a(f"""
    s_load_dwordx16 s[68:83], s[60:61], 128
    s_load_dwordx16 s[84:99], s[60:61], 192
    """)
    for r in range(16):
        a(f"v_mov_b32 v{O + r}, 0")
    a("s_waitcnt lgkmcnt(0)")
    for i in range(32):
        a(f"s_max_u32 s64, s64, s{68 + i}")
    a(f"""
    s_waitcnt vmcnt({len(vm)})
    v_mov_b32 v13, 0
    """)
    for r in range(4):
        a(f"v_dot2_f32_bf16 v13, v{Q + r}, v{Q + r}, v13")
    a(f"""
    s_nop 3
    v_mov_b32 v14, v13
    s_nop 1
    v_permlane32_swap_b32 v13, v14
    s_nop 1
    v_add_f32 v13, v13, v14
    v_mul_f32 v13, s64, v13
    v_cmp_ge_f32 vcc, 0x45610000, v13
    s_nop 4
    s_cmp_eq_u64 vcc, exec
    s_cselect_b32 s20, 0, 1
    """)
    if INSTR:
        a("s_memtime s[74:75]\ns_waitcnt lgkmcnt(0)\ns_mov_b32 s72, s74")
    stamp(a, 0)
    NT = 64
    pf_list = list(prefetch)
    def rdK(i):
        a(f"ds_read_b128 {vr(KF[i % 2])}, v3 offset:{i * 1024}")
    def rdV(i):
        c, j = divmod(i, 16)
        if j == 0 and c > 0:
            a(f"v_add_u32 v12, 17408, v12")
        a(f"""
        ds_read_b128 {vr(VF[i % 2][0])}, v12 offset:{j * 1088}
        ds_read_b128 {vr(VF[i % 2][1])}, v12 offset:{j * 1088 + 544}
        """)
    def qk(i):
        a(f"v_mfma_f32_32x32x16_bf16 {vr(SB[i % 2], 16)}, {vr(KF[i % 2])}, {vr(Q)}, 0")
    def pv(i, t):
        a(f"v_mfma_f32_32x32x16_bf16 {vr(O, 16)}, {vr(VF[i % 2][t])}, {vr(P + 4 * t)}, {vr(O, 16)}")
    def group_wait(g):
        last = max(i for i, t in enumerate(vm) if t == ("g", g))
        a(f"s_waitcnt vmcnt({min(63, len(vm) - 1 - last)})\ns_barrier")
    NBAR = 0
    slow = a.lab("slow")
    done = a.lab("attdone")
    group_wait(0)
    stamp(a, 1)
    a(f"s_cmp_lg_u32 s20, 0\ns_cbranch_scc1 {slow}")
    vm_at_branch = list(vm)
    rdK(0); rdK(1); rdV(0)
    a("s_waitcnt lgkmcnt(3)")
    qk(0)
    a.nop(12)
    def exps(s, lo, hi):
        for r in range(lo, hi):
            a(f"v_exp_f32 v{s + r}, v{s + r}")
    def cvts(s, lo, hi):
        for r in range(lo, hi):
            a(f"v_cvt_pk_bf16_f32 v{P + r}, v{s + 2 * r}, v{s + 2 * r + 1}")
    dma_ops = []
    for g in range(2, 8):
        cp = g // 2
        dma_ops.append((lambda: None, g))
    pending_groups = list(range(2, 8))
    BAR_GROUPS = [1, 3, 7]
    avail = 0
    for i in range(NT):
        s = SB[i % 2]
        exps(s, 0, 4)
        if i > 0:
            pv(i - 1, 1)
        exps(s, 4, 8)
        need = (i + 2) // 8 if i + 2 < NT else 7
        if need > avail:
            g = min(x for x in BAR_GROUPS if x >= need)
            group_wait(g); NBAR += 1
            avail = g
        if i + 1 < NT:
            a("s_waitcnt lgkmcnt(2)" if i > 0 else "s_waitcnt lgkmcnt(2)")
        cvts(s, 0, 4)
        if i + 1 < NT:
            qk(i + 1)
            if i + 2 < NT:
                rdK(i + 2)
        exps(s, 8, 12)
        a(f"s_waitcnt lgkmcnt({1 if i + 2 < NT else 0})")
        pv(i, 0)
        exps(s, 12, 16)
        if pending_groups:
            issue_group(pending_groups.pop(0))
        elif pf_list:
            pf_list.pop(0)(a)
            vm.append(("p", 0))
        else:
            a("s_nop 0")
        cvts(s, 4, 8)
        if i + 1 < NT:
            rdV(i + 1)
    a.nop(2)
    pv(NT - 1, 1)
    assert not pf_list
    a(f"s_branch {done}")
    NEGM = SB[1]
    l_mx, l_sl = a.lab("mx"), a.lab("sl")
    a(f"{slow}:")
    for g in range(2, 8):
        issue_group(g)
    for f in prefetch:
        f(a)
    a("s_waitcnt vmcnt(0)")
    for _ in range(NBAR):
        a("s_barrier")
    a(f"""
    v_mov_b32 v8, v3
    v_mov_b32 v13, 0xff800000
    s_mov_b32 s21, 0
    {l_mx}:
    ds_read_b128 {vr(KF[0])}, v8
    s_waitcnt lgkmcnt(0)
    v_mfma_f32_32x32x16_bf16 {vr(SB[0], 16)}, {vr(KF[0])}, {vr(Q)}, 0
    """)
    a.nop(16)
    for r in range(0, 16, 2):
        a(f"v_max3_f32 v13, v{SB[0] + r}, v{SB[0] + r + 1}, v13")
    a(f"""
    v_add_u32 v8, 1024, v8
    s_add_u32 s21, s21, 1
    s_cmp_lt_u32 s21, 64
    s_cbranch_scc1 {l_mx}
    v_xor_b32 v14, 32, v1
    v_lshlrev_b32 v14, 2, v14
    ds_bpermute_b32 v15, v14, v13
    s_waitcnt lgkmcnt(0)
    v_max_f32 v13, v13, v15
    v_sub_f32 v13, 0, v13
    """)
    for r in range(16):
        a(f"v_mov_b32 v{NEGM + r}, v13")
    a(f"""
    v_mov_b32 v8, v3
    s_mov_b32 s21, 0
    {l_sl}:
    ds_read_b128 {vr(KF[0])}, v8
    ds_read_b128 {vr(VF[0][0])}, v12
    ds_read_b128 {vr(VF[0][1])}, v12 offset:544
    s_waitcnt lgkmcnt(0)
    v_mfma_f32_32x32x16_bf16 {vr(SB[0], 16)}, {vr(KF[0])}, {vr(Q)}, {vr(NEGM, 16)}
    """)
    a.nop(16)
    for r in range(16):
        a(f"v_exp_f32 v{SB[0] + r}, v{SB[0] + r}")
    a("s_nop 0")
    for r in range(8):
        a(f"v_cvt_pk_bf16_f32 v{P + r}, v{SB[0] + 2 * r}, v{SB[0] + 2 * r + 1}")
    a(f"""
    s_nop 1
    v_mfma_f32_32x32x16_bf16 {vr(O, 16)}, {vr(VF[0][0])}, {vr(P)}, {vr(O, 16)}
    v_mfma_f32_32x32x16_bf16 {vr(O, 16)}, {vr(VF[0][1])}, {vr(P + 4)}, {vr(O, 16)}
    v_add_u32 v8, 1024, v8
    v_add_u32 v12, 1088, v12
    s_add_u32 s21, s21, 1
    s_cmp_lt_u32 s21, 64
    s_cbranch_scc1 {l_sl}
    {done}:
    """)
    a.nop(16)
    a(f"v_rcp_f32 v13, v{O + 8}\ns_nop 0")
    for r in range(8):
        a(f"v_mul_f32 v{O + r}, v13, v{O + r}")
    for r in range(4):
        a(f"v_cvt_pk_bf16_f32 v{P + r}, v{O + 2 * r}, v{O + 2 * r + 1}")
    a(f"buffer_store_dwordx4 {vr(P)}, v3, s[40:43], s8 offen sc1")


def phase_wo(a, layer, post_pf):
    dstamp(a, "wo", 0)
    B = 80
    xin = X0_F if layer == 0 else X2_F
    xout = X1_F if layer == 0 else X3_F
    of = O_F + layer * 2048 * KB
    a(f"""
    s_lshl_b32 s8, s5, 16
    s_lshl_b32 s9, s3, 12
    s_add_u32 s8, s8, s9
    s_add_u32 s8, s8, {of}
    s_add_u32 s9, s8, 32768
    """)
    for k in range(4):
        a(f"buffer_load_dwordx4 {vr(B + k * 8)}, v3, s[40:43], s8 offen offset:{k * 1024} sc1")
        a(f"buffer_load_dwordx4 {vr(B + k * 8 + 4)}, v3, s[40:43], s9 offen offset:{k * 1024} sc1")
    owner_frag_off(a, 58, 0)
    a(f"""
    s_add_u32 s59, s58, {xout}
    s_add_u32 s58, s58, {xin}
    buffer_load_dwordx4 v[12:15], v3, s[40:43], s58 offen
    """)
    dstamp(a, "wo", 1)
    for k in range(4):
        a(f"s_waitcnt vmcnt({(3 - k) * 2 + 1})")
        dstamp(a, "wo", 2 + k)
        for n in range(2):
            for t in range(2):
                c = vr(ACC + (n * 2 + t) * 16, 16)
                a(f"v_mfma_f32_32x32x16_bf16 {c}, {vr(R_WOA + (n * 4 + k) * 4)}, {vr(B + k * 8 + t * 4)}, {'0' if k == 0 else c}")
    a.nop(14)
    dstamp(a, "wo", 6)
    reduce8_write(a)
    dstamp(a, "wo", 7)
    for f in post_pf[:6]:
        f(a)
    a("s_waitcnt lgkmcnt(0)\ns_barrier")
    dstamp(a, "wo", 8)
    reduce8_read(a, post_pf[6:])
    dstamp(a, "wo", 9)
    a(f"s_waitcnt vmcnt({len(post_pf)})")
    resid_epilogue(a, 12, 59, False)
    dstamp(a, "wo", 10)

def phase_ffn1(a, layer, loop_pf):
    A1, BB = 16, 48
    CS = 208
    DB = 4
    xin = X1_F if layer == 0 else X3_F
    hf = H_F + layer * 7168 * KB
    a(f"""
    s_lshl_b32 s8, s5, 16
    s_lshl_b32 s9, s3, 13
    s_add_u32 s8, s8, s9
    s_add_u32 s8, s8, {xin}
    s_mov_b32 m0, s9
    s_add_u32 s10, s8, 4096
    """)
    for i in range(4):
        a(f"buffer_load_dwordx4 v3, s[40:43], s8 offen offset:{i * 1024} sc1 lds")
    a("s_add_u32 m0, s9, 4096\ns_nop 0")
    for i in range(4):
        a(f"buffer_load_dwordx4 v3, s[40:43], s10 offen offset:{i * 1024} sc1 lds")
    a(f"""
    v_lshrrev_b32 v4, 5, v1
    v_lshlrev_b32 v4, 4, v4
    s_lshl_b32 s11, s51, 7
    s_add_u32 s11, s11, {CS1}
    v_mov_b32 v8, 0
    v_mov_b32 v9, 0
    v_mov_b32 v10, 0
    v_mov_b32 v11, 0
    s_waitcnt vmcnt(0)
    s_barrier
    """)
    stamp(a, 7)
    def rdB(kt):
        b = BB + (kt % DB) * 8
        a(f"ds_read_b128 {vr(b)}, v3 offset:{kt * 1024}")
        a(f"ds_read_b128 {vr(b + 4)}, v3 offset:{32768 + kt * 1024}")
    pf = list(loop_pf)
    vm = []
    for kt in range(DB - 1):
        rdB(kt)
    for kt in range(32):
        if kt + DB - 1 < 32:
            rdB(kt + DB - 1)
        ahead = min(DB - 1, 31 - kt)
        w = f"lgkmcnt({2 * ahead})"
        a(f"s_waitcnt {w}")
        b = BB + (kt % DB) * 8
        for t in range(2):
            c = vr(A1 + t * 16, 16)
            a(f"v_mfma_f32_32x32x16_bf16 {c}, {vr(w1reg(kt))}, {vr(b + t * 4)}, {'0' if kt == 0 else c}")
        lab = a.lab("st")
        a(f"s_cmp_lg_u32 s3, {kt % 8}\ns_cbranch_scc1 {lab}")
        for t in range(2):
            for r in range(4):
                a(f"v_dot2_f32_bf16 v{8 + 2 * t}, v{b + t * 4 + r}, s50, v{8 + 2 * t}")
                a(f"v_dot2_f32_bf16 v{9 + 2 * t}, v{b + t * 4 + r}, v{b + t * 4 + r}, v{9 + 2 * t}")
        a(f"{lab}:")
        if pf and (kt % 2 == 1 or kt < 4):
            pf.pop(0)(a)
            vm.append("p")
        if kt == 20:
            for j in range(4):
                a(f"buffer_load_dwordx4 {vr(CS + j * 4)}, v4, s[40:43], s11 offen offset:{j * 32}")
                vm.append("cs")
    assert not pf
    a.nop(4)
    a(f"""
    v_mov_b32 v12, v8
    v_mov_b32 v13, v9
    v_mov_b32 v14, v10
    v_mov_b32 v15, v11
    s_nop 1
    v_permlane32_swap_b32 v8, v12
    v_permlane32_swap_b32 v9, v13
    v_permlane32_swap_b32 v10, v14
    v_permlane32_swap_b32 v11, v15
    s_nop 1
    v_add_f32 v8, v8, v12
    v_add_f32 v9, v9, v13
    v_add_f32 v10, v10, v14
    v_add_f32 v11, v11, v15
    s_lshl_b32 s60, s3, 9
    v_and_b32 v5, 31, v1
    v_lshlrev_b32 v5, 4, v5
    v_add_u32 v5, {LDS_STAT}, v5
    v_add_u32 v4, s60, v5
    ds_write_b128 v4, v[8:11]
    s_waitcnt lgkmcnt(0)
    s_barrier
    """)
    stamp(a, 8)
    T = 48
    for w in range(8):
        a(f"ds_read_b128 {vr(T + w * 4)}, v5 offset:{w * 512}")
    a("s_waitcnt lgkmcnt(0)")
    for w in range(1, 8):
        for r in range(4):
            a(f"v_add_f32 v{T + r}, v{T + r}, v{T + w * 4 + r}")
    stats_finish(a, T, T + 1, 8, 9, 12, 13)
    stats_finish(a, T + 2, T + 3, 10, 11, 12, 13)
    last = max(i for i, t in enumerate(vm) if t == "cs")
    a(f"""
    v_mul_f32 v8, v8, v9
    v_mul_f32 v10, v10, v11
    s_waitcnt vmcnt({len(vm) - 1 - last})
    """)
    for t in range(2):
        for r in range(16):
            c = A1 + t * 16 + r
            a(f"v_mul_f32 v{c}, v{9 + 2 * t}, v{c}")
            a(f"v_fma_f32 v{c}, -v{8 + 2 * t}, v{CS + r}, v{c}")
        for r in range(8):
            a(f"v_cvt_pk_bf16_f32 v{T + t * 8 + r}, v{A1 + t * 16 + 2 * r}, v{A1 + t * 16 + 2 * r + 1}")
        for r in range(8):
            a(f"v_pk_max_i16 v{T + t * 8 + r}, v{T + t * 8 + r}, 0")
    lab = a.lab("f1s")
    a(f"""
    s_cmp_eq_u32 s3, 7
    s_cbranch_scc1 {lab}
    s_mul_i32 s12, s5, 224
    s_lshl_b32 s13, s51, 1
    s_add_u32 s12, s12, s13
    s_lshl_b32 s12, s12, 10
    s_add_u32 s12, s12, {hf}
    s_add_u32 s13, s12, {112 * 1024}
    buffer_store_dwordx4 {vr(T)}, v3, s[40:43], s12 offen sc1
    buffer_store_dwordx4 {vr(T + 4)}, v3, s[40:43], s12 offen offset:1024 sc1
    buffer_store_dwordx4 {vr(T + 8)}, v3, s[40:43], s13 offen sc1
    buffer_store_dwordx4 {vr(T + 12)}, v3, s[40:43], s13 offen offset:1024 sc1
    {lab}:
    """)

def phase_ffn2(a, layer, loop_pf):
    final = layer == 1
    RB = 208
    D = 6
    xin = X1_F if layer == 0 else X3_F
    hf = H_F + layer * 7168 * KB
    a(f"""
    s_mul_i32 s9, s3, {14 * 1024}
    s_mul_i32 s10, s5, {224 * 1024}
    s_add_u32 s10, s10, s9
    s_add_u32 s10, s10, {hf}
    s_add_u32 s11, s10, {112 * 1024}
    """)
    def load(k):
        b = RB + (k % D) * 8
        o = (k % 4) * 1024
        a(f"buffer_load_dwordx4 {vr(b)}, v3, s[40:43], s10 offen offset:{o} sc1")
        a(f"buffer_load_dwordx4 {vr(b + 4)}, v3, s[40:43], s11 offen offset:{o} sc1")
        if k % 4 == 3:
            a("s_add_u32 s10, s10, 4096\ns_add_u32 s11, s11, 4096")
    owner_frag_off(a, 58, 0)
    a(f"""
    s_add_u32 s59, s58, {X2_F}
    s_add_u32 s58, s58, {xin}
    buffer_load_dwordx4 v[12:15], v3, s[40:43], s58 offen sc1
    """)
    for k in range(D):
        load(k)
    order = []
    for k in range(D):
        order += [("b", k), ("b", k)]
    pf = list(loop_pf)
    for k in range(14):
        last = max(i for i, t in enumerate(order) if t == ("b", k))
        a(f"s_waitcnt vmcnt({len(order) - 1 - last})")
        b = RB + (k % D) * 8
        for n in range(2):
            for t in range(2):
                c = vr(ACC + (n * 2 + t) * 16, 16)
                a(f"v_mfma_f32_32x32x16_bf16 {c}, {vr(w2reg(k * 2 + n))}, {vr(b + t * 4)}, {'0' if k == 0 else c}")
        if k + D < 14:
            load(k + D)
            order += [("b", k + D)] * 2
    a.nop(14)
    reduce8_write(a)
    for f in pf[:6]:
        f(a)
    a("s_waitcnt lgkmcnt(0)\ns_barrier")
    reduce8_read(a, pf[6:])
    resid_epilogue(a, 12, 59, final)

def phase_qkv(a, layer, sc):
    B = 208
    KV = 80
    xin = X0_F if layer == 0 else X2_F
    qf, kf, vf, kn = Q_F + layer * 2048 * KB, K_F + layer * 64 * KB, VT_F + layer * VT_SZ, KN2 + layer * 256
    scs = " sc1" if sc else ""
    a(f"""
    s_lshl_b32 s8, s5, 16
    s_lshl_b32 s9, s3, 12
    s_add_u32 s8, s8, s9
    s_add_u32 s8, s8, {xin}
    s_add_u32 s9, s8, 32768
    """)
    for k in range(4):
        a(f"buffer_load_dwordx4 {vr(B + k * 8)}, v3, s[40:43], s8 offen offset:{k * 1024}{scs}")
        a(f"buffer_load_dwordx4 {vr(B + k * 8 + 4)}, v3, s[40:43], s9 offen offset:{k * 1024}{scs}")
    owner_frag_off(a, 58, qf)
    a(f"""
    v_lshrrev_b32 v4, 5, v1
    v_lshlrev_b32 v4, 4, v4
    s_lshl_b32 s60, s57, 6
    s_add_u32 s60, s60, {CSQ}
    buffer_load_dwordx4 v[240:243], v4, s[40:43], s60 offen
    buffer_load_dwordx4 v[244:247], v4, s[40:43], s60 offen offset:32
    s_mov_b32 s60, {CSKV}
    buffer_load_dwordx4 v[248:251], v4, s[40:43], s60 offen
    buffer_load_dwordx4 v[252:255], v4, s[40:43], s60 offen offset:32
    v_and_b32 v5, 31, v1
    v_lshlrev_b32 v5, 2, v5
    buffer_load_dword v15, v5, s[40:43], s60 offen
    v_mov_b32 v8, 0
    v_mov_b32 v9, 0
    v_mov_b32 v10, 0
    v_mov_b32 v11, 0
    """)
    NX = 5
    lkv = [a.lab("kvm") for _ in range(5)]
    for k in range(4):
        a(f"s_waitcnt vmcnt({(3 - k) * 2 + NX})")
        for n in range(2):
            for t in range(2):
                c = vr(ACC + (n * 2 + t) * 16, 16)
                a(f"v_mfma_f32_32x32x16_bf16 {c}, {vr(R_WQA + (n * 4 + k) * 4)}, {vr(B + k * 8 + t * 4)}, {'0' if k == 0 else c}")
        for t in range(2):
            for r in range(4):
                b = B + k * 8 + t * 4 + r
                a(f"v_dot2_f32_bf16 v{8 + 2 * t}, v{b}, s50, v{8 + 2 * t}")
                a(f"v_dot2_f32_bf16 v{9 + 2 * t}, v{b}, v{b}, v{9 + 2 * t}")
    lend = a.lab("kve")
    a(f"s_cmp_ge_u32 s6, 4\ns_cbranch_scc1 {lend}")
    for m in range(4):
        t = m & 1
        lnext = a.lab("kvn")
        a(f"s_cmp_lg_u32 s6, {m}\ns_cbranch_scc1 {lnext}")
        for k in range(4):
            w, x = vr(R_WKV + k * 4), vr(B + k * 8 + t * 4)
            c = vr(KV, 16)
            if m < 2:
                a(f"v_mfma_f32_32x32x16_bf16 {c}, {w}, {x}, {'0' if k == 0 else c}")
            else:
                a(f"v_mfma_f32_32x32x16_bf16 {c}, {x}, {w}, {'0' if k == 0 else c}")
        a(f"s_branch {lend}\n{lnext}:")
    a(f"{lend}:")
    a.nop(14)
    a(f"""
    s_lshl_b32 s60, s3, 10
    v_lshlrev_b32 v4, 3, v1
    v_add_u32 v4, s60, v4
    v_add_u32 v4, {LDS_STAT}, v4
    ds_write_b64 v4, v[8:9]
    ds_write_b64 v4, v[10:11] offset:512
    """)
    reduce8_write(a)
    LKV = LDS_STAT + 8192 - 131072 * 0
    l1 = a.lab("kvw")
    a(f"""
    s_cmp_ge_u32 s6, 4
    s_cbranch_scc1 {l1}
    s_mul_i32 s60, s3, {16384 + 2048}
    v_add_u32 v2, s60, v3
    ds_write_b128 v2, {vr(KV)} offset:{LDS_RED}
    ds_write_b128 v2, {vr(KV + 4)} offset:{LDS_RED + 1024}
    s_lshl_b32 s60, s3, 11
    v_add_u32 v2, s60, v3
    v_add_u32 v2, {LDS_KV2}, v2
    ds_write_b128 v2, {vr(KV + 8)}
    ds_write_b128 v2, {vr(KV + 12)} offset:1024
    {l1}:
    s_waitcnt lgkmcnt(0)
    s_barrier
    """)
    reduce8_read(a)
    a(f"""
    v_and_b32 v2, 31, v1
    v_lshlrev_b32 v2, 3, v2
    v_add_u32 v2, {LDS_STAT}, v2
    """)
    T = 16
    for t in range(2):
        for i in range(16):
            w, h = i >> 1, i & 1
            a(f"ds_read_b64 v[{T + 2 * i}:{T + 2 * i + 1}], v2 offset:{w * 1024 + t * 512 + h * 256}")
        a("s_waitcnt lgkmcnt(0)")
        for i in range(1, 16):
            a(f"v_add_f32 v{T}, v{T}, v{T + 2 * i}\nv_add_f32 v{T + 1}, v{T + 1}, v{T + 2 * i + 1}")
        stats_finish(a, T, T + 1, 72 + 2 * t, 73 + 2 * t, 12, 13)
    l2 = a.lab("qt")
    a(f"""
    v_mov_b32 v12, v72
    v_mov_b32 v13, v73
    s_bitcmp0_b32 s3, 1
    s_cbranch_scc1 {l2}
    v_mov_b32 v12, v74
    v_mov_b32 v13, v75
    {l2}:
    v_mul_f32 v13, 0x3eb8aa3b, v13
    s_waitcnt vmcnt(0)
    """)
    for r in range(8):
        a(f"v_fma_f32 v{4 + r}, -v12, v{240 + r}, v{4 + r}")
        a(f"v_mul_f32 v{4 + r}, v13, v{4 + r}")
    for r in range(4):
        a(f"v_cvt_pk_bf16_f32 v{64 + r}, v{4 + 2 * r}, v{5 + 2 * r}")
    a(f"buffer_store_dwordx4 v[64:67], v3, s[40:43], s58 offen")
    fin = a.lab("kvfin")
    lv = a.lab("kvv")
    a(f"""
    s_cmp_ge_u32 s6, 4
    s_cbranch_scc1 {fin}
    s_cmp_ge_u32 s3, 2
    s_cbranch_scc1 {fin}
    s_and_b32 s7, s6, 1
    s_lshl_b32 s8, s5, 1
    s_add_u32 s8, s8, s7
    s_cmp_eq_u32 s3, 1
    s_cselect_b32 s9, 1, 0
    s_cmp_lt_u32 s6, 2
    s_cselect_b32 s10, 1, 0
    s_and_b32 s10, s10, s9
    s_cmp_lg_u32 s10, 0
    s_cbranch_scc1 {fin}
    """)
    la, lb = a.lab("ka"), a.lab("kb")
    a(f"""
    s_cmp_eq_u32 s3, 1
    s_cbranch_scc1 {la}
    v_add_u32 v2, {LDS_RED}, v3
    s_mov_b32 s11, {16384 + 2048}
    s_branch {lb}
    {la}:
    v_add_u32 v2, {LDS_KV2}, v3
    s_mov_b32 s11, 2048
    {lb}:
    """)
    for w in range(8):
        a(f"ds_read_b128 {vr(144 + w * 8)}, v2\nds_read_b128 {vr(148 + w * 8)}, v2 offset:1024\nv_add_u32 v2, s11, v2")
    a("s_waitcnt lgkmcnt(0)")
    for w in range(1, 8):
        for r in range(8):
            a(f"v_add_f32 v{144 + r}, v{144 + r}, v{144 + w * 8 + r}")
    l3 = a.lab("kt")
    a(f"""
    s_cmp_eq_u32 s7, 0
    s_cbranch_scc1 {l3}
    v_mov_b32 v72, v74
    v_mov_b32 v73, v75
    {l3}:
    s_cmp_ge_u32 s6, 2
    s_cbranch_scc1 {lv}
    """)
    for r in range(8):
        a(f"v_fma_f32 v{144 + r}, -v72, v{248 + r}, v{144 + r}")
        a(f"v_mul_f32 v{144 + r}, v73, v{144 + r}")
    for r in range(4):
        a(f"v_cvt_pk_bf16_f32 v{160 + r}, v{144 + 2 * r}, v{145 + 2 * r}")
    a(f"""
    s_lshl_b32 s9, s8, 10
    s_add_u32 s9, s9, {kf}
    buffer_store_dwordx4 v[160:163], v3, s[40:43], s9 offen
    v_mov_b32 v8, 0
    """)
    for r in range(4):
        a(f"v_dot2_f32_bf16 v8, v{160 + r}, v{160 + r}, v8")
    a.nop(4)
    for i, x in enumerate((32, 16, 8, 4, 2, 1)):
        a(f"""
        v_xor_b32 v9, {x}, v1
        v_lshlrev_b32 v9, 2, v9
        ds_bpermute_b32 v10, v9, v8
        s_waitcnt lgkmcnt(0)
        {'v_add_f32' if i == 0 else 'v_max_f32'} v8, v8, v10
        """)
    a(f"""
    s_lshl_b32 s9, s8, 2
    s_add_u32 s9, s9, {kn}
    v_mov_b32 v9, 0
    s_mov_b64 exec, 1
    buffer_store_dword v8, v9, s[40:43], s9 offen
    s_mov_b64 exec, -1
    s_branch {fin}
    {lv}:
    """)
    a(f"""
    s_lshl_b32 s60, s3, 8
    v_and_b32 v4, 31, v1
    v_lshlrev_b32 v4, 2, v4
    v_add_u32 v4, s60, v4
    v_add_u32 v4, {LDS_PRIV}, v4
    ds_write_b32 v4, v72
    ds_write_b32 v4, v73 offset:128
    v_lshrrev_b32 v5, 5, v1
    v_lshlrev_b32 v5, 4, v5
    s_lshl_b32 s61, s3, 6
    s_add_u32 s60, s60, s61
    v_add_u32 v5, s60, v5
    v_add_u32 v5, {LDS_PRIV}, v5
    ds_read_b128 v[160:163], v5
    ds_read_b128 v[164:167], v5 offset:32
    ds_read_b128 v[168:171], v5 offset:128
    ds_read_b128 v[172:175], v5 offset:160
    s_waitcnt lgkmcnt(0)
    """)
    for r in range(8):
        a(f"v_fma_f32 v{144 + r}, -v{160 + r}, v15, v{144 + r}")
        a(f"v_mul_f32 v{144 + r}, v{168 + r}, v{144 + r}")
    for r in range(4):
        a(f"v_cvt_pk_bf16_f32 v{176 + r}, v{144 + 2 * r}, v{145 + 2 * r}")
    a(f"""
    v_and_b32 v4, 15, v1
    v_lshrrev_b32 v5, 5, v1
    v_lshl_add_u32 v4, v5, 4, v4
    v_lshlrev_b32 v4, 4, v4
    s_lshl_b32 s9, s8, 1
    s_add_u32 s9, s9, s3
    s_mul_i32 s9, s9, {VSTEP}
    s_add_u32 s9, s9, {vf}
    s_mov_b32 s12, 0xffff0000
    s_mov_b32 s13, 0xffff0000
    s_mov_b64 exec, s[12:13]
    buffer_store_dwordx4 v[176:179], v4, s[40:43], s9 offen
    s_mov_b64 exec, 3
    v_cmp_eq_u32 vcc, 0, v1
    v_mov_b32 v180, 0
    v_mov_b32 v181, s50
    s_nop 1
    v_cndmask_b32 v180, v180, v181, vcc
    v_mov_b32 v181, v180
    v_mov_b32 v182, v180
    v_mov_b32 v183, v180
    buffer_store_dwordx4 v[180:183], v3, s[40:43], s9 offen offset:512
    s_mov_b64 exec, -1
    {fin}:
    """)

LDS_KV2 = LDS_STAT + 8192
LDS_PRIV = LDS_KV2 + 16384
LDS_TOTAL = LDS_PRIV + 1024

def gen_qkv0():
    a = Asm("q0")
    name = "qkv0_kernel"
    begin(a, name, 256)
    group_map(a)
    for i in range(8):
        pf_wq(a, i)
    for k in range(4):
        pf_wkv(a, k)
    phase_qkv(a, 0, False)
    end(a, name)
    KERNELS.append((name, a.text(), 256, 72))
    return f"; @launch kernel={name} grid=(256,1,1) block=(512,1,1) lds={LDS_TOTAL}"

def gen_layer(layer):
    a = Asm(f"l{layer}")
    name = f"layer{layer}_kernel"
    begin(a, name, 256)
    group_map(a)
    pf_att = [(lambda a, i=i: pf_wo(a, i)) for i in range(8)] + [(lambda a, k=k: pf_w1(a, k)) for k in range(28)]
    a("v_lshlrev_b32 v100, 7, v1")
    pf_att += [(lambda a: warm(a, 45, 28 * KB, 32))]
    for n in range(2):
        pf_att += [(lambda a, n=n: warm(a, 46, n * 112 * KB, 64)), (lambda a, n=n: warm(a, 46, n * 112 * KB + 8192, 48))]
    if layer == 0:
        pf_att += [(lambda a: warm(a, 47, 0, 32)), (lambda a: warm(a, 47, 32768, 32))]
    phase_att(a, layer, pf_att)
    stamp(a, 2)
    signal(a, layer, 0)
    stamp(a, 3)
    wait_flag(a, layer, 0)
    stamp(a, 4)
    phase_wo(a, layer, [(lambda a, k=k: pf_w1(a, k)) for k in range(28, 32)] + [(lambda a, f=f: pf_w2(a, f)) for f in range(12)])
    stamp(a, 5)
    signal(a, layer, 1)
    dstamp(a, "wo", 11)
    wait_flag(a, layer, 1)
    dstamp(a, "wo", 12)
    stamp(a, 6)
    phase_ffn1(a, layer, [(lambda a, f=f: pf_w2(a, f)) for f in range(12, 28)])
    stamp(a, 9)
    signal(a, layer, 2)
    wait_flag(a, layer, 2)
    stamp(a, 10)
    if layer == 0:
        pfq = [(lambda a, i=i: pf_wq(a, i)) for i in range(8)] + [(lambda a, k=k: pf_wkv(a, k)) for k in range(4)]
    else:
        pfq = []
    phase_ffn2(a, layer, pfq)
    stamp(a, 11)
    if layer == 0:
        signal(a, layer, 3)
        wait_flag(a, layer, 3)
        stamp(a, 12)
        phase_qkv(a, 1, True)
        stamp(a, 13)
    if INSTR:
        a("s_waitcnt vmcnt(0)")
    stamp(a, 14)
    stamp_flush(a, 15)
    end(a, name)
    KERNELS.append((name, a.text(), 256, 100))
    return f"; @launch kernel={name} grid=(256,1,1) block=(512,1,1) lds={LDS_TOTAL}"

def main():
    launches = [gen_prep(), gen_qkv0(), gen_layer(0), gen_layer(1)]
    hdr = open("interleave_layers__grouped_kv_mqa__dense_activation_relu__prompt.s.ref").read().split("; Override launch")[0]
    s = hdr + "\n".join(launches) + "\n"
    s += '.amdgcn_target "amdgcn-amd-amdhsa--gfx950"\n.text\n'
    for n, t, nv, ns in KERNELS:
        s += f".globl {n}\n.type {n},@function\n" + t
    s += '.section .rodata,"a"\n'
    for n, t, nv, ns in KERNELS:
        s += f""".p2align 6
.amdhsa_kernel {n}
  .amdhsa_next_free_vgpr {nv}
  .amdhsa_next_free_sgpr {100 if INSTR else ns}
  .amdhsa_accum_offset {(nv + 3) // 4 * 4}
  .amdhsa_group_segment_fixed_size 0
  .amdhsa_kernarg_size 88
  .amdhsa_user_sgpr_count 2
  .amdhsa_user_sgpr_kernarg_segment_ptr 1
  .amdhsa_system_sgpr_workgroup_id_x 1
.end_amdhsa_kernel
"""
    open(OUT, "w").write(s)

if __name__ == "__main__":
    main()
```

```python
import sys, os

OUT = os.environ.get("OUTS", "interleave_layers__grouped_kv_mqa__dense_activation_relu__prompt.s")
INSTR = os.environ.get("INSTR", "0") == "1"
INSTR_WG = int(os.environ.get("INSTR_WG", "0"))
INSTR_WAVE = int(os.environ.get("INSTR_WAVE", "0"))

KB = 1024
WQ_F = 0
WKV_F = WQ_F + 512 * KB
WO_F = WKV_F + 32 * KB
W1_F = WO_F + 512 * KB
W2_F = W1_F + 1792 * KB
CSQ = W2_F + 1792 * KB
CSKV = CSQ + 2 * KB
CS1 = CSKV + 1 * KB
KN2 = CS1 + 8 * KB
FLAGS = KN2 + 1 * KB
X0_F = (FLAGS + 48 * KB + 4095) // 4096 * 4096
X1_F = X0_F + 2048 * KB
X2_F = X1_F + 2048 * KB
X3_F = X2_F + 2048 * KB
Q_F = X3_F + 2048 * KB
K_F = Q_F + 4096 * KB
VSTEP = 544
VT_SZ = 128 * VSTEP
VT_F = K_F + 128 * KB
O_F = VT_F + 136 * KB
H_F = O_F + 4096 * KB
ST_F = H_F + 2 * 7168 * KB
WS_END = ST_F + 3 * 512 * KB

class Asm:
    def __init__(self, uid):
        self.lines = []
        self.uid = uid
        self.n = 0
    def __call__(self, s):
        for l in s.strip("\n").split("\n"):
            l = l.strip()
            if not l: continue
            self.lines.append(l if l.endswith(":") else "    " + l)
    def nop(self, n):
        while n > 0:
            k = min(n, 16)
            self(f"s_nop {k-1}")
            n -= k
    def lab(self, s):
        self.n += 1
        return f"L{self.uid}_{s}_{self.n}"
    def text(self):
        return "\n".join(self.lines) + "\n"

def vr(a, n=4):
    return f"v[{a}:{a+n-1}]"

KERNELS = []
P_X, P_WQ, P_WK, P_WV, P_WO, P_BX, P_W1, P_W2, P_OUT, P_DBG, P_WS = 16, 18, 20, 22, 24, 26, 28, 30, 32, 34, 36

NSTAMP = 16
DETAIL = os.environ.get("DETAIL", "")
EXP = os.environ.get("EXP", "").split(",")
def dstamp(a, ph, i):
    if INSTR and DETAIL == ph:
        a(f"s_memtime s[96:97]\ns_waitcnt lgkmcnt(0)\ns_mov_b32 s{80+i}, s96")
def stamp(a, i):
    if not INSTR or DETAIL: return
    a(f"s_memtime s[96:97]\ns_waitcnt lgkmcnt(0)\ns_mov_b32 s{80+i}, s96")

def stamp_flush(a, n):
    if not INSTR: return
    lab = a.lab("sf")
    a(f"""
    s_cmp_lg_u32 s2, {INSTR_WG}
    s_cbranch_scc1 {lab}
    s_cmp_lg_u32 s3, {INSTR_WAVE}
    s_cbranch_scc1 {lab}
    s_mov_b32 s64, s34
    s_and_b32 s65, s35, 0xffff
    s_mov_b32 s66, 256
    s_mov_b32 s67, 0x00020000
    s_mov_b64 exec, 1
    v_mov_b32 v2, 0
    """)
    for i in range(n):
        a(f"s_sub_u32 s96, s{80+i}, s98\nv_mov_b32 v0, s96\nbuffer_store_dword v0, v2, s[64:67], 0 offen offset:{4*i}\ns_nop 1")
    a(f"s_waitcnt vmcnt(0)\n{lab}:")

def begin(a, name, nwg):
    a(f".p2align 8\n{name}:")
    a(f"""
    s_cmp_ge_u32 s2, {nwg}
    s_cbranch_scc1 {name}_exit
    s_load_dwordx16 s[16:31], s[0:1], 0
    s_load_dwordx4 s[32:35], s[0:1], 64
    s_load_dwordx2 s[36:37], s[0:1], 80
    v_lshrrev_b32 v2, 6, v0
    v_and_b32 v1, 63, v0
    v_readfirstlane_b32 s3, v2
    v_lshlrev_b32 v3, 4, v1
    s_waitcnt lgkmcnt(0)
    s_mov_b32 s40, s36
    s_and_b32 s41, s37, 0xffff
    s_mov_b32 s42, {WS_END}
    s_mov_b32 s43, 0x00020000
    """)
    if INSTR:
        a("s_memtime s[96:97]\ns_waitcnt lgkmcnt(0)\ns_mov_b32 s98, s96")

def end(a, name):
    a(f"{name}_exit:\ns_endpgm")

def srd(a, d, sp, nbytes):
    a(f"""
    s_mov_b32 s{d}, s{sp}
    s_and_b32 s{d+1}, s{sp+1}, 0xffff
    s_mov_b32 s{d+2}, {nbytes}
    s_mov_b32 s{d+3}, 0x00020000
    """)

def bf16r(a, d, s):
    a(f"v_cvt_pk_bf16_f32 v{d}, v{s}, v{s}\nv_lshlrev_b32 v{d}, 16, v{d}")

def stats_finish(a, s1, s2, vm, vr_, t0, t1):
    a(f"""
    v_mul_f32 v{t0}, 0x3b000000, v{s1}
    v_mul_f32 v{t1}, 0x3b000000, v{s2}
    v_fma_f32 v{t1}, -v{t0}, v{t0}, v{t1}
    v_max_f32 v{t1}, 0, v{t1}
    """)
    bf16r(a, vm, t0)
    bf16r(a, t1, t1)
    a(f"v_add_f32 v{t1}, 0x3727c5ac, v{t1}")
    bf16r(a, t1, t1)
    a(f"v_sqrt_f32 v{t1}, v{t1}\ns_nop 0")
    bf16r(a, t1, t1)
    a(f"v_rcp_f32 v{vr_}, v{t1}\ns_nop 0")

def gen_prep():
    a = Asm("prep")
    name = "prep_kernel"
    B_Q, B_KV, B_1, B_O, B_2, B_Z = 64, 80, 81, 137, 169, 281
    NWG = 282
    begin(a, name, NWG)
    a(f"""
    v_and_b32 v4, 31, v1
    v_lshrrev_b32 v5, 5, v1
    s_mov_b32 s50, 0x3f803f80
    s_cmp_ge_u32 s2, {B_Z}
    s_cbranch_scc1 prep_z
    s_cmp_ge_u32 s2, {B_2}
    s_cbranch_scc1 prep_w2
    s_cmp_ge_u32 s2, {B_O}
    s_cbranch_scc1 prep_wo
    s_cmp_ge_u32 s2, {B_1}
    s_cbranch_scc1 prep_w1
    s_cmp_ge_u32 s2, {B_KV}
    s_cbranch_scc1 prep_kv
    s_cmp_ge_u32 s2, {B_Q}
    s_cbranch_scc1 prep_wq
    """)
    srd(a, 44, P_X, 2048 * 1024)
    a(f"""
    s_lshl_b32 s4, s2, 2
    s_add_u32 s4, s4, s3
    s_lshr_b32 s6, s4, 2
    s_and_b32 s7, s4, 3
    v_lshlrev_b32 v6, 10, v4
    v_lshl_add_u32 v6, v5, 3, v6
    s_lshl_b32 s9, s6, 15
    s_lshl_b32 s10, s7, 8
    s_add_u32 s9, s9, s10
    s_lshl_b32 s8, s4, 13
    s_add_u32 s8, s8, {X0_F}
    s_add_u32 s10, s8, 4096
    """)
    for t in range(8):
        a(f"buffer_load_dwordx2 {vr(8 + t * 4, 2)}, v6, s[44:47], s9 offen offset:{t * 32}")
        a(f"buffer_load_dwordx2 {vr(10 + t * 4, 2)}, v6, s[44:47], s9 offen offset:{t * 32 + 16}")
    for t in range(8):
        a(f"s_waitcnt vmcnt({(7 - t) * 2 + t})")
        a(f"buffer_store_dwordx4 {vr(8 + t * 4)}, v3, s[40:43], s{8 if t < 4 else 10} offen offset:{(t % 4) * 1024}")
    a("s_endpgm")
    a("prep_wq:")
    srd(a, 44, P_WQ, 512 * 1024)
    a(f"""
    s_sub_u32 s6, s2, {B_Q}
    s_mov_b32 s5, 1024
    s_mov_b32 s8, {WQ_F}
    s_mov_b32 s12, {CSQ}
    s_branch prep_ngo
    prep_w1:
    """)
    srd(a, 44, P_W1, 512 * 3584)
    a(f"""
    s_sub_u32 s6, s2, {B_1}
    s_mov_b32 s5, 3584
    s_mov_b32 s8, {W1_F}
    s_mov_b32 s12, {CS1}
    prep_ngo:
    s_lshl_b32 s9, s6, 15
    s_add_u32 s8, s8, s9
    s_lshl_b32 s9, s3, 13
    s_add_u32 s8, s8, s9
    s_lshl_b32 s9, s6, 7
    s_add_u32 s12, s12, s9
    s_lshl_b32 s9, s5, 2
    v_mul_u32_u24 v6, s9, v5
    v_lshl_add_u32 v6, v4, 1, v6
    s_lshl_b32 s9, s3, 7
    s_mul_i32 s9, s9, s5
    s_lshl_b32 s10, s6, 6
    s_add_u32 s9, s9, s10
    s_mul_i32 s11, s5, 5
    """)
    for t in range(8):
        for e in range(8):
            a(f"buffer_load_ushort v{48 + t * 8 + e}, v6, s[44:47], s9 offen")
            a("s_add_u32 s9, s9, s11" if e in (3, 7) else "s_add_u32 s9, s9, s5")
    a("prep_npack:")
    a("s_add_u32 s10, s8, 4096\nv_mov_b32 v7, 0")
    for t in range(8):
        a(f"s_waitcnt vmcnt({min(63, (7 - t) * 8 + t)})")
        for r in range(4):
            a(f"v_lshl_or_b32 v{8 + t * 4 + r}, v{48 + t * 8 + 2 * r + 1}, 16, v{48 + t * 8 + 2 * r}")
        a(f"buffer_store_dwordx4 {vr(8 + t * 4)}, v3, s[40:43], s{8 if t < 4 else 10} offen offset:{(t % 4) * 1024}")
        for r in range(4):
            a(f"v_dot2_f32_bf16 v7, v{8 + t * 4 + r}, s50, v7")
    a(f"""
    s_nop 3
    v_lshlrev_b32 v6, 2, v0
    ds_write_b32 v6, v7
    s_waitcnt lgkmcnt(0)
    s_barrier
    s_cmp_lg_u32 s3, 0
    s_cbranch_scc1 {name}_exit
    v_lshlrev_b32 v6, 2, v4
    """)
    for i in range(8):
        a(f"ds_read_b32 v{8 + i}, v6 offset:{i * 128}")
    a("s_waitcnt lgkmcnt(0)")
    for i in range(1, 8):
        a(f"v_add_f32 v8, v8, v{8 + i}")
    a(f"""
    buffer_store_dword v8, v6, s[40:43], s12 offen
    s_endpgm
    """)
    a("prep_kv:")
    srd(a, 44, P_WK, 512 * 32)
    srd(a, 52, P_WV, 512 * 32)
    a(f"""
    s_lshl_b32 s8, s3, 13
    s_add_u32 s8, s8, {WKV_F}
    s_mov_b32 s12, {CSKV}
    v_and_b32 v6, 15, v1
    v_lshlrev_b32 v6, 1, v6
    v_lshl_add_u32 v6, v5, 7, v6
    s_lshl_b32 s9, s3, 12
    v_cmp_gt_u32 vcc, 16, v4
    s_mov_b64 s[14:15], vcc
    s_not_b64 s[56:57], vcc
    """)
    for half, (m, sr) in enumerate(((14, 44), (56, 52))):
        a(f"s_mov_b64 exec, s[{m}:{m+1}]")
        for t in range(8):
            for e in range(8):
                row = t * 16 + (e & 3) + (e >> 2) * 8
                a(f"buffer_load_ushort v{48 + t * 8 + e}, v6, s[{sr}:{sr+3}], s9 offen offset:{row * 32}")
    a("s_mov_b64 exec, -1\ns_waitcnt vmcnt(0)\ns_branch prep_npack")
    a("prep_wo:")
    srd(a, 44, P_WO, 512 * 1024)
    a(f"""
    s_sub_u32 s4, s2, {B_O}
    s_lshl_b32 s4, s4, 2
    s_add_u32 s4, s4, s3
    s_mov_b32 s8, {WO_F}
    s_lshr_b32 s6, s4, 3
    s_and_b32 s7, s4, 7
    s_branch prep_wgo
    prep_w2:
    """)
    srd(a, 44, P_W2, 1792 * 1024)
    a(f"""
    s_sub_u32 s4, s2, {B_2}
    s_lshl_b32 s4, s4, 2
    s_add_u32 s4, s4, s3
    s_mov_b32 s8, {W2_F}
    s_mov_b32 s9, 153391690
    s_mul_hi_u32 s6, s4, s9
    s_mul_i32 s9, s6, 28
    s_sub_u32 s7, s4, s9
    prep_wgo:
    s_lshl_b32 s9, s4, 12
    s_add_u32 s8, s8, s9
    v_lshlrev_b32 v6, 12, v5
    v_lshl_add_u32 v6, v4, 1, v6
    s_lshl_b32 s9, s7, 16
    s_lshl_b32 s10, s6, 6
    s_add_u32 s9, s9, s10
    """)
    for t in range(4):
        for e in range(8):
            row = (e & 3) + (e >> 2) * 8
            if row < 4:
                a(f"buffer_load_ushort v{48 + t * 8 + e}, v6, s[44:47], s9 offen offset:{row * 1024}")
            else:
                if e == 4:
                    a("s_add_u32 s10, s9, 8192")
                a(f"buffer_load_ushort v{48 + t * 8 + e}, v6, s[44:47], s10 offen offset:{(row - 8) * 1024}")
        a("s_add_u32 s9, s9, 16384")
    for t in range(4):
        a(f"s_waitcnt vmcnt({(3 - t) * 8 + t})")
        for r in range(4):
            a(f"v_lshl_or_b32 v{8 + t * 4 + r}, v{48 + t * 8 + 2 * r + 1}, 16, v{48 + t * 8 + 2 * r}")
        a(f"buffer_store_dwordx4 {vr(8 + t * 4)}, v3, s[40:43], s8 offen offset:{t * 1024}")
    a("s_endpgm")
    a(f"""
    prep_z:
    v_mov_b32 v8, 0
    v_mov_b32 v9, 0
    v_mov_b32 v10, 0
    v_mov_b32 v11, 0
    s_mul_i32 s8, s3, 12288
    s_add_u32 s8, s8, {FLAGS}
    s_add_u32 s9, s8, 4096
    s_add_u32 s10, s8, 8192
    """)
    for i in range(4):
        a(f"buffer_store_dwordx4 v[8:11], v3, s[40:43], s8 offen offset:{i * 1024}")
        a(f"buffer_store_dwordx4 v[8:11], v3, s[40:43], s9 offen offset:{i * 1024}")
        a(f"buffer_store_dwordx4 v[8:11], v3, s[40:43], s10 offen offset:{i * 1024}")
    end(a, name)
    KERNELS.append((name, a.text(), 112, 64))
    return f"; @launch kernel={name} grid=({NWG},1,1) block=(256,1,1) lds=4096"

ACC = 16
R_WOA = 112
R_W1A = 144
R_W1B = 80
R_W2A0 = 96
R_W2A1 = 144
R_WQA = 96
R_WKV = 128
LDS_RED = 0
LDS_STAT = 135168
LDS_TOTAL = 135168 + 8192 + 4096

def w1reg(kt):
    return R_W1A + kt * 4 if kt < 28 else R_W1B + (kt - 28) * 4
def w2reg(f):
    return R_W2A0 + f * 4 if f < 12 else R_W2A1 + (f - 12) * 4

def group_map(a):
    a(f"""
    s_and_b32 s60, s2, 7
    s_lshr_b32 s61, s2, 3
    s_lshl_b32 s5, s60, 2
    s_lshr_b32 s62, s61, 3
    s_add_u32 s5, s5, s62
    s_and_b32 s6, s61, 7
    s_mov_b32 s50, 0x3f803f80
    """)
    a(f"""
    s_lshl_b32 s60, s6, 16
    s_lshl_b32 s61, s3, 12
    s_add_u32 s60, s60, s61
    s_add_u32 s44, s60, {WO_F}
    s_add_u32 s47, s60, {WQ_F}
    s_min_u32 s51, s3, 6
    s_mul_i32 s60, s6, 7
    s_add_u32 s51, s51, s60
    s_lshl_b32 s45, s51, 15
    s_add_u32 s45, s45, {W1_F}
    s_mul_i32 s60, s6, {224 * KB}
    s_mul_i32 s61, s3, {14 * KB}
    s_add_u32 s46, s60, s61
    s_add_u32 s46, s46, {W2_F}
    """)

def pf_wo(a, i):
    n, k = i >> 2, i & 3
    if n == 1:
        a(f"s_add_u32 s60, s44, 32768\nbuffer_load_dwordx4 {vr(R_WOA + i * 4)}, v3, s[40:43], s60 offen offset:{k * 1024}")
    else:
        a(f"buffer_load_dwordx4 {vr(R_WOA + i * 4)}, v3, s[40:43], s44 offen offset:{k * 1024}")
def pf_w1(a, kt):
    a(f"s_add_u32 s60, s45, {(kt // 4) * 4096}\nbuffer_load_dwordx4 {vr(w1reg(kt))}, v3, s[40:43], s60 offen offset:{(kt % 4) * 1024}")
def pf_w2(a, f):
    k, n = f >> 1, f & 1
    a(f"s_add_u32 s60, s46, {n * 112 * KB + (k // 4) * 4096}\nbuffer_load_dwordx4 {vr(w2reg(f))}, v3, s[40:43], s60 offen offset:{(k % 4) * 1024}")
def pf_wq(a, i):
    n, k = i >> 2, i & 3
    a(f"s_add_u32 s60, s47, {n * 32768}\nbuffer_load_dwordx4 {vr(R_WQA + i * 4)}, v3, s[40:43], s60 offen offset:{k * 1024}")
def pf_wkv(a, k):
    a(f"s_lshl_b32 s60, s3, 12\ns_add_u32 s60, s60, {WKV_F}\nbuffer_load_dwordx4 {vr(R_WKV + k * 4)}, v3, s[40:43], s60 offen offset:{k * 1024}")

def warm(a, sbase, off, nlines):
    a(f"s_add_u32 s60, s{sbase}, {off}\nbuffer_load_dword v101, v100, s[40:43], s60 offen")

def place_register(a, layer):
    lab = a.lab("pr")
    a(f"""
    s_getreg_b32 s53, hwreg(HW_REG_XCC_ID)
    s_and_b32 s53, s53, 7
    s_lshl_b32 s53, s53, 2
    s_lshl_b32 s54, s5, 7
    s_add_u32 s54, s54, {FLAGS + (8 + layer) * 4096}
    s_cmp_lg_u32 s3, 7
    s_cbranch_scc1 {lab}
    s_lshl_b32 s60, 1, s53
    v_mov_b32 v4, s60
    v_mov_b32 v5, 0
    s_mov_b64 exec, 1
    buffer_atomic_add v4, v5, s[40:43], s54 offen
    s_mov_b64 exec, -1
    {lab}:
    """)

def place_resolve(a):
    lp, ld, lc = a.lab("pp"), a.lab("pd"), a.lab("pc")
    a(f"""
    s_mov_b32 s61, 0
    s_branch {lc}
    {lp}:
    buffer_load_dword v102, v103, s[40:43], s54 offen sc1
    {lc}:
    s_waitcnt vmcnt(0)
    v_readfirstlane_b32 s62, v102
    s_and_b32 s63, s62, 0x0f0f0f0f
    s_lshr_b32 s60, s62, 4
    s_and_b32 s60, s60, 0x0f0f0f0f
    s_add_u32 s63, s63, s60
    s_mul_i32 s63, s63, 0x01010101
    s_lshr_b32 s63, s63, 24
    s_cmp_ge_u32 s63, 8
    s_cbranch_scc1 {ld}
    s_add_u32 s61, s61, 1
    s_cmp_ge_u32 s61, 0x400000
    s_cbranch_scc1 {ld}
    s_sleep 1
    s_branch {lp}
    {ld}:
    s_lshl_b32 s60, 8, s53
    s_cmp_eq_u32 s62, s60
    s_cselect_b32 s52, 1, 0
    """)

def hstore(a, stores):
    l1, l2 = a.lab("hs"), a.lab("he")
    a(f"s_cmp_eq_u32 s52, 1\ns_cbranch_scc1 {l1}")
    for st in stores:
        a(st + " sc1")
    a(f"s_branch {l2}\n{l1}:")
    for st in stores:
        a(st)
    a(f"{l2}:")

def signal(a, layer, phase):
    lab = a.lab("sig")
    a(f"""
    s_waitcnt vmcnt(0)
    s_barrier
    s_cmp_lg_u32 s3, 7
    s_cbranch_scc1 {lab}
    s_lshl_b32 s60, s5, 7
    s_lshl_b32 s61, s6, 2
    s_add_u32 s60, s60, s61
    s_add_u32 s60, s60, {FLAGS + (layer * 4 + phase) * 4096}
    v_mov_b32 v4, 1
    v_mov_b32 v5, 0
    s_mov_b64 exec, 1
    """)
    hstore(a, ["buffer_store_dword v4, v5, s[40:43], s60 offen"])
    a(f"""
    s_mov_b64 exec, -1
    {lab}:
    """)

def wait_flag(a, layer, phase):
    lp, ld = a.lab("wp"), a.lab("wd")
    a(f"""
    s_lshl_b32 s60, s5, 7
    s_lshl_b32 s61, s3, 2
    s_add_u32 s60, s60, s61
    s_add_u32 s60, s60, {FLAGS + (layer * 4 + phase) * 4096}
    v_mov_b32 v5, 0
    s_mov_b32 s61, 0
    s_mov_b64 exec, 1
    {lp}:
    buffer_load_dword v4, v5, s[40:43], s60 offen sc1
    s_waitcnt vmcnt(0)
    v_readfirstlane_b32 s62, v4
    s_cmp_eq_u32 s62, 1
    s_cbranch_scc1 {ld}
    s_add_u32 s61, s61, 1
    s_cmp_ge_u32 s61, 0x400000
    s_cbranch_scc1 {ld}
    s_sleep 1
    s_branch {lp}
    {ld}:
    s_mov_b64 exec, -1
    """)

def reduce8_write(a, spr=None):
    a(f"""
    s_lshl_b32 s60, s3, 14
    v_add_u32 v0, s60, v3
    """)
    for s in range(8):
        l1, l2 = a.lab("rw"), a.lab("rx")
        a(f"s_cmp_eq_u32 s3, {s}\ns_cbranch_scc1 {l1}")
        for g in range(2):
            a(f"ds_write_b128 v0, {vr(ACC + s * 8 + g * 4)} offset:{LDS_RED + s * 2048 + g * 1024}")
        a(f"s_branch {l2}\n{l1}:")
        for r in range(8):
            a(f"v_mov_b32 v{4 + r}, v{ACC + s * 8 + r}")
        a(f"{l2}:")
        if spr:
            spr.pop(0)(a)

def reduce8_read(a, mid=()):
    a(f"""
    s_lshl_b32 s60, s3, 11
    v_add_u32 v0, s60, v3
    """)
    for d in range(1, 8):
        a(f"""
        s_add_u32 s61, s3, {d}
        s_and_b32 s61, s61, 7
        s_lshl_b32 s61, s61, 14
        v_add_u32 v2, s61, v0
        ds_read_b128 {vr(ACC + (d - 1) * 8)}, v2 offset:{LDS_RED}
        ds_read_b128 {vr(ACC + (d - 1) * 8 + 4)}, v2 offset:{LDS_RED + 1024}
        """)
    for f in mid:
        f(a)
    for d in range(1, 8):
        a(f"s_waitcnt lgkmcnt({(7 - d) * 2})")
        for r in range(8):
            a(f"v_add_f32 v{4 + r}, v{4 + r}, v{ACC + (d - 1) * 8 + r}")

def owner_frag_off(a, sdst, base):
    a(f"""
    s_lshr_b32 s60, s3, 1
    s_and_b32 s56, s60, 1
    s_lshl_b32 s61, s5, 1
    s_add_u32 s56, s56, s61
    s_lshr_b32 s57, s3, 2
    s_lshl_b32 s61, s6, 1
    s_add_u32 s57, s57, s61
    s_lshl_b32 s57, s57, 1
    s_and_b32 s61, s3, 1
    s_add_u32 s57, s57, s61
    s_lshl_b32 s{sdst}, s56, 5
    s_add_u32 s{sdst}, s{sdst}, s57
    s_lshl_b32 s{sdst}, s{sdst}, 10
    s_add_u32 s{sdst}, s{sdst}, {base}
    """)

def resid_epilogue(a, X, sdst, final, sti=None):
    T = ACC
    for r in range(4):
        a(f"v_cvt_pk_bf16_f32 v{T + r}, v{4 + 2 * r}, v{5 + 2 * r}")
    for r in range(4):
        a(f"""
        v_lshlrev_b32 v{4 + 2 * r}, 16, v{T + r}
        v_and_b32 v{5 + 2 * r}, 0xffff0000, v{T + r}
        v_lshlrev_b32 v{T + 8}, 16, v{X + r}
        v_and_b32 v{T + 9}, 0xffff0000, v{X + r}
        v_add_f32 v{4 + 2 * r}, v{4 + 2 * r}, v{T + 8}
        v_add_f32 v{5 + 2 * r}, v{5 + 2 * r}, v{T + 9}
        """)
    for r in range(4):
        a(f"v_cvt_pk_bf16_f32 v{T + r}, v{4 + 2 * r}, v{5 + 2 * r}")
    if not final:
        for r in range(4):
            a(f"v_lshlrev_b32 v{4 + 2 * r}, 16, v{T + r}\nv_and_b32 v{5 + 2 * r}, 0xffff0000, v{T + r}")
        a(f"""
        v_add_f32 v{T + 8}, v4, v5
        v_mul_f32 v{T + 9}, v4, v4
        v_fmac_f32 v{T + 9}, v5, v5
        """)
        for r in range(2, 8):
            a(f"v_add_f32 v{T + 8}, v{T + 8}, v{4 + r}\nv_fmac_f32 v{T + 9}, v{4 + r}, v{4 + r}")
        a(f"""
        v_mov_b32 v{T + 10}, v{T + 8}
        v_mov_b32 v{T + 11}, v{T + 9}
        v_and_b32 v0, 31, v1
        v_lshlrev_b32 v0, 3, v0
        v_permlane32_swap_b32 v{T + 8}, v{T + 10}
        v_permlane32_swap_b32 v{T + 9}, v{T + 11}
        s_lshl_b32 s60, s56, 5
        s_add_u32 s60, s60, s57
        s_lshl_b32 s60, s60, 8
        s_add_u32 s60, s60, {ST_F + sti * 512 * KB}
        v_add_f32 v{T + 8}, v{T + 8}, v{T + 10}
        v_add_f32 v{T + 9}, v{T + 9}, v{T + 11}
        """)
        hstore(a, [f"buffer_store_dwordx4 {vr(T)}, v3, s[40:43], s{sdst} offen",
                   f"buffer_store_dwordx2 v[{T + 8}:{T + 9}], v0, s[40:43], s60 offen"])
    else:
        srd(a, 64, P_OUT, 2048 * 1024)
        a(f"""
        v_and_b32 v0, 31, v1
        v_lshlrev_b32 v0, 10, v0
        v_lshrrev_b32 v2, 5, v1
        v_lshl_add_u32 v0, v2, 3, v0
        s_lshl_b32 s60, s56, 15
        s_lshl_b32 s61, s57, 5
        s_add_u32 s60, s60, s61
        buffer_store_dwordx2 {vr(T, 2)}, v0, s[64:67], s60 offen
        buffer_store_dwordx2 {vr(T + 2, 2)}, v0, s[64:67], s60 offen offset:16
        """)

def phase_att(a, layer, prefetch):
    Q, O = 16, 20
    SB = (36, 52)
    P = 68
    KF = (76, 80)
    VF = ((84, 88), (92, 96))
    LK, LV = 0, 65536
    qf, kf, vf, of, kn = Q_F + layer * 2048 * KB, K_F + layer * 64 * KB, VT_F + layer * VT_SZ, O_F + layer * 2048 * KB, KN2 + layer * 256
    a(f"""
    s_add_u32 s60, s36, {kn}
    s_addc_u32 s61, s37, 0
    s_load_dwordx16 s[64:79], s[60:61], 0
    s_load_dwordx16 s[80:95], s[60:61], 64
    s_and_b32 s7, s3, 1
    s_lshl_b32 s8, s5, 1
    s_add_u32 s8, s8, s7
    s_lshr_b32 s9, s3, 1
    s_lshl_b32 s10, s6, 2
    s_add_u32 s9, s9, s10
    s_lshl_b32 s8, s8, 5
    s_add_u32 s8, s8, s9
    s_lshl_b32 s8, s8, 10
    s_add_u32 s9, s8, {qf}
    s_add_u32 s8, s8, {of}
    buffer_load_dwordx4 {vr(Q)}, v3, s[40:43], s9 offen
    s_lshl_b32 s10, s3, 10
    """)
    def dma_k(c):
        a(f"""
        s_add_u32 m0, s10, {LK + c * 8192}
        s_add_u32 s14, s10, {kf + c * 8192}
        buffer_load_dwordx4 v3, s[40:43], s14 offen lds
        """)
    def dma_v(cp, j):
        if j < 2:
            a(f"""
            s_add_u32 m0, s10, {LV + cp * 17408 + j * 8192}
            s_add_u32 s14, s10, {vf + cp * 17408 + j * 8192}
            buffer_load_dwordx4 v3, s[40:43], s14 offen lds
            """)
        else:
            a(f"""
            s_mov_b32 m0, {LV + cp * 17408 + 16384}
            s_mov_b32 s14, {vf + cp * 17408 + 16384}
            buffer_load_dwordx4 v3, s[40:43], s14 offen lds
            """)
    vm = []
    def issue_group(g):
        cp = g // 2
        dma_k(g); vm.append(("g", g))
        if g % 2 == 0:
            dma_v(cp, 0); vm.append(("g", g))
            dma_v(cp, 1); vm.append(("g", g))
        else:
            dma_v(cp, 2); vm.append(("g", g))
    issue_group(0)
    issue_group(1)
    a(f"""
    v_and_b32 v10, 31, v1
    v_lshrrev_b32 v12, 5, v1
    v_lshl_add_u32 v12, v12, 4, v10
    v_lshlrev_b32 v12, 4, v12
    v_mov_b32 v11, 528
    v_cmp_eq_u32 vcc, 16, v10
    v_cmp_eq_u32 s[12:13], 20, v10
    s_or_b64 s[12:13], vcc, s[12:13]
    v_mov_b32 v13, 512
    s_nop 1
    v_cndmask_b32 v11, v11, v13, s[12:13]
    v_cmp_gt_u32 vcc, 16, v10
    s_nop 1
    v_cndmask_b32 v12, v11, v12, vcc
    v_add_u32 v12, {LV}, v12
    s_waitcnt lgkmcnt(0)
    """)
    for i in range(1, 32):
        a(f"s_max_u32 s64, s64, s{64 + i}")
    a(f"""
    s_load_dwordx16 s[68:83], s[60:61], 128
    s_load_dwordx16 s[84:99], s[60:61], 192
    """)
    for r in range(16):
        a(f"v_mov_b32 v{O + r}, 0")
    a("s_waitcnt lgkmcnt(0)")
    for i in range(32):
        a(f"s_max_u32 s64, s64, s{68 + i}")
    a(f"""
    s_waitcnt vmcnt({len(vm)})
    v_mov_b32 v13, 0
    """)
    for r in range(4):
        a(f"v_dot2_f32_bf16 v13, v{Q + r}, v{Q + r}, v13")
    a(f"""
    s_nop 3
    v_mov_b32 v14, v13
    s_nop 1
    v_permlane32_swap_b32 v13, v14
    s_nop 1
    v_add_f32 v13, v13, v14
    v_mul_f32 v13, s64, v13
    v_cmp_ge_f32 vcc, 0x45610000, v13
    s_nop 4
    s_cmp_eq_u64 vcc, exec
    s_cselect_b32 s20, 0, 1
    """)
    if INSTR:
        a("s_memtime s[96:97]\ns_waitcnt lgkmcnt(0)\ns_mov_b32 s98, s96")
    stamp(a, 0)
    NT = 64
    pf_list = list(prefetch)
    def rdK(i):
        a(f"ds_read_b128 {vr(KF[i % 2])}, v3 offset:{i * 1024}")
    def rdV(i):
        c, j = divmod(i, 16)
        if j == 0 and c > 0:
            a(f"v_add_u32 v12, 17408, v12")
        a(f"""
        ds_read_b128 {vr(VF[i % 2][0])}, v12 offset:{j * 1088}
        ds_read_b128 {vr(VF[i % 2][1])}, v12 offset:{j * 1088 + 544}
        """)
    def qk(i):
        a(f"v_mfma_f32_32x32x16_bf16 {vr(SB[i % 2], 16)}, {vr(KF[i % 2])}, {vr(Q)}, 0")
    def pv(i, t):
        a(f"v_mfma_f32_32x32x16_bf16 {vr(O, 16)}, {vr(VF[i % 2][t])}, {vr(P + 4 * t)}, {vr(O, 16)}")
    def group_wait(g):
        last = max(i for i, t in enumerate(vm) if t == ("g", g))
        a(f"s_waitcnt vmcnt({min(63, len(vm) - 1 - last)})\ns_barrier")
    NBAR = 0
    slow = a.lab("slow")
    done = a.lab("attdone")
    group_wait(0)
    stamp(a, 1)
    a(f"s_cmp_lg_u32 s20, 0\ns_cbranch_scc1 {slow}")
    vm_at_branch = list(vm)
    rdK(0); rdK(1); rdV(0)
    a("s_waitcnt lgkmcnt(3)")
    qk(0)
    a.nop(12)
    def exps(s, lo, hi):
        for r in range(lo, hi):
            a(f"v_exp_f32 v{s + r}, v{s + r}")
    def cvts(s, lo, hi):
        for r in range(lo, hi):
            a(f"v_cvt_pk_bf16_f32 v{P + r}, v{s + 2 * r}, v{s + 2 * r + 1}")
    dma_ops = []
    for g in range(2, 8):
        cp = g // 2
        dma_ops.append((lambda: None, g))
    pending_groups = list(range(2, 8))
    BAR_GROUPS = [1, 3, 7]
    avail = 0
    for i in range(NT):
        s = SB[i % 2]
        exps(s, 0, 4)
        if i > 0:
            pv(i - 1, 1)
        exps(s, 4, 8)
        need = (i + 2) // 8 if i + 2 < NT else 7
        if need > avail:
            g = min(x for x in BAR_GROUPS if x >= need)
            group_wait(g); NBAR += 1
            avail = g
        if i + 1 < NT:
            a("s_waitcnt lgkmcnt(2)" if i > 0 else "s_waitcnt lgkmcnt(2)")
        cvts(s, 0, 4)
        if i + 1 < NT:
            qk(i + 1)
            if i + 2 < NT:
                rdK(i + 2)
        exps(s, 8, 12)
        a(f"s_waitcnt lgkmcnt({1 if i + 2 < NT else 0})")
        pv(i, 0)
        exps(s, 12, 16)
        if pending_groups:
            issue_group(pending_groups.pop(0))
        elif pf_list:
            pf_list.pop(0)(a)
            vm.append(("p", 0))
        else:
            a("s_nop 0")
        cvts(s, 4, 8)
        if i + 1 < NT:
            rdV(i + 1)
    a.nop(2)
    pv(NT - 1, 1)
    assert not pf_list
    a(f"s_branch {done}")
    NEGM = SB[1]
    l_mx, l_sl = a.lab("mx"), a.lab("sl")
    a(f"{slow}:")
    for g in range(2, 8):
        issue_group(g)
    for f in prefetch:
        f(a)
    a("s_waitcnt vmcnt(0)")
    for _ in range(NBAR):
        a("s_barrier")
    a(f"""
    v_mov_b32 v8, v3
    v_mov_b32 v13, 0xff800000
    s_mov_b32 s21, 0
    {l_mx}:
    ds_read_b128 {vr(KF[0])}, v8
    s_waitcnt lgkmcnt(0)
    v_mfma_f32_32x32x16_bf16 {vr(SB[0], 16)}, {vr(KF[0])}, {vr(Q)}, 0
    """)
    a.nop(16)
    for r in range(0, 16, 2):
        a(f"v_max3_f32 v13, v{SB[0] + r}, v{SB[0] + r + 1}, v13")
    a(f"""
    v_add_u32 v8, 1024, v8
    s_add_u32 s21, s21, 1
    s_cmp_lt_u32 s21, 64
    s_cbranch_scc1 {l_mx}
    v_xor_b32 v14, 32, v1
    v_lshlrev_b32 v14, 2, v14
    ds_bpermute_b32 v15, v14, v13
    s_waitcnt lgkmcnt(0)
    v_max_f32 v13, v13, v15
    v_sub_f32 v13, 0, v13
    """)
    for r in range(16):
        a(f"v_mov_b32 v{NEGM + r}, v13")
    a(f"""
    v_mov_b32 v8, v3
    s_mov_b32 s21, 0
    {l_sl}:
    ds_read_b128 {vr(KF[0])}, v8
    ds_read_b128 {vr(VF[0][0])}, v12
    ds_read_b128 {vr(VF[0][1])}, v12 offset:544
    s_waitcnt lgkmcnt(0)
    v_mfma_f32_32x32x16_bf16 {vr(SB[0], 16)}, {vr(KF[0])}, {vr(Q)}, {vr(NEGM, 16)}
    """)
    a.nop(16)
    for r in range(16):
        a(f"v_exp_f32 v{SB[0] + r}, v{SB[0] + r}")
    a("s_nop 0")
    for r in range(8):
        a(f"v_cvt_pk_bf16_f32 v{P + r}, v{SB[0] + 2 * r}, v{SB[0] + 2 * r + 1}")
    a(f"""
    s_nop 1
    v_mfma_f32_32x32x16_bf16 {vr(O, 16)}, {vr(VF[0][0])}, {vr(P)}, {vr(O, 16)}
    v_mfma_f32_32x32x16_bf16 {vr(O, 16)}, {vr(VF[0][1])}, {vr(P + 4)}, {vr(O, 16)}
    v_add_u32 v8, 1024, v8
    v_add_u32 v12, 1088, v12
    s_add_u32 s21, s21, 1
    s_cmp_lt_u32 s21, 64
    s_cbranch_scc1 {l_sl}
    {done}:
    """)
    a.nop(16)
    a(f"v_rcp_f32 v13, v{O + 8}\ns_nop 0")
    for r in range(8):
        a(f"v_mul_f32 v{O + r}, v13, v{O + r}")
    for r in range(4):
        a(f"v_cvt_pk_bf16_f32 v{P + r}, v{O + 2 * r}, v{O + 2 * r + 1}")
    place_resolve(a)
    hstore(a, [f"buffer_store_dwordx4 {vr(P)}, v3, s[40:43], s8 offen"])


def phase_wo(a, layer, post_pf):
    dstamp(a, "wo", 0)
    B = 80
    xin = X0_F if layer == 0 else X2_F
    xout = X1_F if layer == 0 else X3_F
    of = O_F + layer * 2048 * KB
    a(f"""
    s_lshl_b32 s8, s5, 16
    s_lshl_b32 s9, s3, 12
    s_add_u32 s8, s8, s9
    s_add_u32 s8, s8, {of}
    s_add_u32 s9, s8, 32768
    """)
    for k in range(4):
        a(f"buffer_load_dwordx4 {vr(B + k * 8)}, v3, s[40:43], s8 offen offset:{k * 1024} sc1")
        a(f"buffer_load_dwordx4 {vr(B + k * 8 + 4)}, v3, s[40:43], s9 offen offset:{k * 1024} sc1")
    owner_frag_off(a, 58, 0)
    if layer == 0:
        srd(a, 64, P_X, 2048 * 1024)
        a(f"""
        s_add_u32 s59, s58, {xout}
        v_and_b32 v0, 31, v1
        v_lshlrev_b32 v0, 10, v0
        v_lshrrev_b32 v2, 5, v1
        v_lshl_add_u32 v0, v2, 3, v0
        s_lshl_b32 s60, s56, 15
        s_lshl_b32 s61, s57, 5
        s_add_u32 s60, s60, s61
        buffer_load_dwordx2 v[12:13], v0, s[64:67], s60 offen
        buffer_load_dwordx2 v[14:15], v0, s[64:67], s60 offen offset:16
        """)
        NR = 2
    else:
        a(f"""
        s_add_u32 s59, s58, {xout}
        s_add_u32 s58, s58, {xin}
        buffer_load_dwordx4 v[12:15], v3, s[40:43], s58 offen
        """)
        NR = 1
    dstamp(a, "wo", 1)
    for k in range(4):
        a(f"s_waitcnt vmcnt({(3 - k) * 2 + NR})")
        dstamp(a, "wo", 2 + k)
        for n in range(2):
            for t in range(2):
                c = vr(ACC + (n * 2 + t) * 16, 16)
                a(f"v_mfma_f32_32x32x16_bf16 {c}, {vr(R_WOA + (n * 4 + k) * 4)}, {vr(B + k * 8 + t * 4)}, {'0' if k == 0 else c}")
    a.nop(14)
    dstamp(a, "wo", 6)
    spr = list(post_pf)
    reduce8_write(a, spr)
    dstamp(a, "wo", 7)
    a("s_waitcnt lgkmcnt(0)\ns_barrier")
    dstamp(a, "wo", 8)
    reduce8_read(a, spr)
    dstamp(a, "wo", 9)
    a(f"s_waitcnt vmcnt({len(post_pf)})")
    resid_epilogue(a, 12, 59, False, 0 if layer == 0 else 2)
    dstamp(a, "wo", 10)

def phase_ffn1(a, layer, loop_pf):
    A1, BB = 16, 48
    CS = 208
    DB = 4
    xin = X1_F if layer == 0 else X3_F
    hf = H_F + layer * 7168 * KB
    a(f"""
    s_lshl_b32 s8, s5, 16
    s_lshl_b32 s9, s3, 12
    s_add_u32 s8, s8, s9
    s_add_u32 s8, s8, {xin}
    s_mov_b32 m0, s9
    s_add_u32 s10, s8, 32768
    """)
    for i in range(4):
        a(f"buffer_load_dwordx4 v3, s[40:43], s8 offen offset:{i * 1024} sc1 lds")
    a("s_add_u32 m0, s9, 32768\ns_nop 0")
    for i in range(4):
        a(f"buffer_load_dwordx4 v3, s[40:43], s10 offen offset:{i * 1024} sc1 lds")
    a(f"""
    v_lshrrev_b32 v4, 5, v1
    v_lshlrev_b32 v4, 4, v4
    s_lshl_b32 s11, s51, 7
    s_add_u32 s11, s11, {CS1}
    v_mov_b32 v8, 0
    v_mov_b32 v9, 0
    v_mov_b32 v10, 0
    v_mov_b32 v11, 0
    s_waitcnt vmcnt(0)
    s_barrier
    """)
    stamp(a, 7)
    l_w7, l_join = a.lab("w7"), a.lab("f1j")
    a(f"s_cmp_eq_u32 s3, 7\ns_cbranch_scc1 {l_w7}")
    def rdB(kt):
        b = BB + (kt % DB) * 8
        a(f"ds_read_b128 {vr(b)}, v3 offset:{kt * 1024}")
        a(f"ds_read_b128 {vr(b + 4)}, v3 offset:{32768 + kt * 1024}")
    pf = list(loop_pf)
    vm = []
    for kt in range(DB - 1):
        rdB(kt)
    for kt in range(32):
        if kt + DB - 1 < 32:
            rdB(kt + DB - 1)
        ahead = min(DB - 1, 31 - kt)
        w = f"lgkmcnt({2 * ahead})"
        a(f"s_waitcnt {w}")
        b = BB + (kt % DB) * 8
        for t in range(2):
            c = vr(A1 + t * 16, 16)
            a(f"v_mfma_f32_32x32x16_bf16 {c}, {vr(w1reg(kt))}, {vr(b + t * 4)}, {'0' if kt == 0 else c}")
        if pf and kt % 4 != 3 and pf[0][0] - 12 <= kt:
            fn = pf.pop(0)[1]
            if "nopf" not in EXP:
                fn(a)
                vm.append("p")
        if kt == 20:
            for j in range(4):
                a(f"buffer_load_dwordx4 {vr(CS + j * 4)}, v4, s[40:43], s11 offen offset:{j * 32}")
                vm.append("cs")
    assert not pf
    a.nop(8)
    a(f"s_branch {l_join}\n{l_w7}:")
    sti = 0 if layer == 0 else 2
    a(f"""
    v_and_b32 v5, 31, v1
    v_lshlrev_b32 v5, 3, v5
    v_lshrrev_b32 v6, 5, v1
    v_lshl_add_u32 v5, v6, 12, v5
    s_lshl_b32 s60, s5, 14
    s_add_u32 s60, s60, {ST_F + sti * 512 * KB}
    s_add_u32 s61, s60, 8192
    """)
    for t in range(2):
        for i in range(16):
            a(f"buffer_load_dwordx2 v[{16 + t * 32 + 2 * i}:{17 + t * 32 + 2 * i}], v5, s[40:43], s{60 + t} offen offset:{i * 256} sc1")
    a("s_waitcnt vmcnt(0)")
    for t in range(2):
        b = 16 + t * 32
        for i in range(1, 16):
            a(f"v_add_f32 v{b}, v{b}, v{b + 2 * i}\nv_add_f32 v{b + 1}, v{b + 1}, v{b + 2 * i + 1}")
    a(f"""
    v_mov_b32 v4, v16
    v_mov_b32 v6, v17
    v_mov_b32 v8, v48
    v_mov_b32 v10, v49
    v_mov_b32 v12, v16
    v_mov_b32 v13, v17
    v_mov_b32 v14, v48
    v_mov_b32 v15, v49
    s_nop 1
    v_permlane32_swap_b32 v4, v12
    v_permlane32_swap_b32 v6, v13
    v_permlane32_swap_b32 v8, v14
    v_permlane32_swap_b32 v10, v15
    s_nop 1
    v_add_f32 v4, v4, v12
    v_add_f32 v6, v6, v13
    v_add_f32 v8, v8, v14
    v_add_f32 v10, v10, v15
    """)
    stats_finish(a, 4, 6, 16, 17, 12, 13)
    stats_finish(a, 8, 10, 18, 19, 12, 13)
    a(f"""
    v_mul_f32 v16, v16, v17
    v_mul_f32 v18, v18, v19
    v_and_b32 v5, 31, v1
    v_lshlrev_b32 v5, 4, v5
    v_add_u32 v5, {LDS_STAT}, v5
    ds_write_b128 v5, v[16:19]
    """)
    for f, fn in loop_pf:
        fn(a)
    a(f"""
    s_waitcnt lgkmcnt(0)
    {l_join}:
    v_and_b32 v5, 31, v1
    v_lshlrev_b32 v5, 4, v5
    v_add_u32 v5, {LDS_STAT}, v5
    s_barrier
    """)
    stamp(a, 8)
    T = 48
    lab = a.lab("f1s")
    a(f"s_cmp_eq_u32 s3, 7\ns_cbranch_scc1 {lab}")
    last = max(i for i, t in enumerate(vm) if t == "cs")
    a(f"""
    ds_read_b128 v[8:11], v5
    s_waitcnt vmcnt({len(vm) - 1 - last}) lgkmcnt(0)
    """)
    for t in range(2):
        for r in range(16):
            c = A1 + t * 16 + r
            a(f"v_mul_f32 v{c}, v{9 + 2 * t}, v{c}")
            a(f"v_fma_f32 v{c}, -v{8 + 2 * t}, v{CS + r}, v{c}")
        for r in range(8):
            a(f"v_cvt_pk_bf16_f32 v{T + t * 8 + r}, v{A1 + t * 16 + 2 * r}, v{A1 + t * 16 + 2 * r + 1}")
        for r in range(8):
            a(f"v_pk_max_i16 v{T + t * 8 + r}, v{T + t * 8 + r}, 0")
    a(f"""
    s_mul_i32 s12, s5, 224
    s_lshl_b32 s13, s51, 1
    s_add_u32 s12, s12, s13
    s_lshl_b32 s12, s12, 10
    s_add_u32 s12, s12, {hf}
    s_add_u32 s13, s12, {112 * 1024}
    """)
    hstore(a, [f"buffer_store_dwordx4 {vr(T)}, v3, s[40:43], s12 offen",
               f"buffer_store_dwordx4 {vr(T + 4)}, v3, s[40:43], s12 offen offset:1024",
               f"buffer_store_dwordx4 {vr(T + 8)}, v3, s[40:43], s13 offen",
               f"buffer_store_dwordx4 {vr(T + 12)}, v3, s[40:43], s13 offen offset:1024"])
    a(f"{lab}:")

def phase_ffn2(a, layer, loop_pf):
    dstamp(a, "f2", 0)
    final = layer == 1
    RB = 208
    D = int(os.environ.get('F2D', '4'))
    xin = X1_F if layer == 0 else X3_F
    hf = H_F + layer * 7168 * KB
    a(f"""
    s_mul_i32 s9, s3, {14 * 1024}
    s_mul_i32 s10, s5, {224 * 1024}
    s_add_u32 s10, s10, s9
    s_add_u32 s10, s10, {hf}
    s_add_u32 s11, s10, {112 * 1024}
    """)
    def load(k):
        b = RB + (k % D) * 8
        o = (k % 4) * 1024
        a(f"buffer_load_dwordx4 {vr(b)}, v3, s[40:43], s10 offen offset:{o} sc1")
        a(f"buffer_load_dwordx4 {vr(b + 4)}, v3, s[40:43], s11 offen offset:{o} sc1")
        if k % 4 == 3:
            a("s_add_u32 s10, s10, 4096\ns_add_u32 s11, s11, 4096")
    owner_frag_off(a, 58, 0)
    a(f"""
    s_add_u32 s59, s58, {X2_F}
    s_add_u32 s58, s58, {xin}
    buffer_load_dwordx4 v[12:15], v3, s[40:43], s58 offen sc1
    """)
    for k in range(D):
        load(k)
    order = []
    for k in range(D):
        order += [("b", k), ("b", k)]
    pf = list(loop_pf)
    dstamp(a, "f2", 1)
    for k in range(14):
        last = max(i for i, t in enumerate(order) if t == ("b", k))
        a(f"s_waitcnt vmcnt({len(order) - 1 - last})")
        if k in (0, 3, 6, 9, 13): dstamp(a, "f2", 2 + (0, 3, 6, 9, 13).index(k))
        b = RB + (k % D) * 8
        for n in range(2):
            for t in range(2):
                c = vr(ACC + (n * 2 + t) * 16, 16)
                a(f"v_mfma_f32_32x32x16_bf16 {c}, {vr(w2reg(k * 2 + n))}, {vr(b + t * 4)}, {'0' if k == 0 else c}")
        if k + D < 14:
            load(k + D)
            order += [("b", k + D)] * 2
    a.nop(14)
    dstamp(a, "f2", 7)
    reduce8_write(a, pf)
    dstamp(a, "f2", 8)
    a("s_waitcnt lgkmcnt(0)\ns_barrier")
    dstamp(a, "f2", 9)
    reduce8_read(a, pf)
    dstamp(a, "f2", 10)
    resid_epilogue(a, 12, 59, final, 1)
    dstamp(a, "f2", 11)

def phase_qkv(a, layer, raw, after_bar=None):
    dstamp(a, "qkv", 0)
    B = 208
    KV = 80
    CQ = (144, 160)
    CK = 176
    ONES = 192
    qf, kf, vf, kn = Q_F + layer * 2048 * KB, K_F + layer * 64 * KB, VT_F + layer * VT_SZ, KN2 + layer * 256
    LDS_CS = LDS_STAT + 4096
    owner_frag_off(a, 58, qf)
    if not raw:
        a(f"""
        s_lshl_b32 s8, s5, 16
        s_lshl_b32 s9, s3, 12
        s_add_u32 s8, s8, s9
        s_add_u32 s8, s8, {X2_F}
        s_add_u32 s9, s8, 32768
        """)
        for k in range(4):
            a(f"buffer_load_dwordx4 {vr(B + k * 8)}, v3, s[40:43], s8 offen offset:{k * 1024} sc1")
            a(f"buffer_load_dwordx4 {vr(B + k * 8 + 4)}, v3, s[40:43], s9 offen offset:{k * 1024} sc1")
        a(f"""
        v_and_b32 v6, 31, v1
        v_lshlrev_b32 v6, 3, v6
        v_lshrrev_b32 v7, 5, v1
        v_lshl_add_u32 v6, v7, 9, v6
        s_lshl_b32 s60, s5, 14
        s_lshl_b32 s61, s3, 10
        s_add_u32 s60, s60, s61
        s_add_u32 s60, s60, {ST_F + 1 * 512 * KB}
        s_add_u32 s61, s60, 8192
        buffer_load_dwordx2 v[8:9], v6, s[40:43], s60 offen sc1
        buffer_load_dwordx2 v[200:201], v6, s[40:43], s60 offen offset:256 sc1
        buffer_load_dwordx2 v[10:11], v6, s[40:43], s61 offen sc1
        buffer_load_dwordx2 v[202:203], v6, s[40:43], s61 offen offset:256 sc1
        v_lshrrev_b32 v4, 5, v1
        v_lshlrev_b32 v4, 4, v4
        s_lshl_b32 s60, s57, 6
        s_add_u32 s60, s60, {CSQ}
        buffer_load_dwordx4 v[240:243], v4, s[40:43], s60 offen
        buffer_load_dwordx4 v[244:247], v4, s[40:43], s60 offen offset:32
        s_mov_b32 s60, {CSKV}
        buffer_load_dwordx4 v[248:251], v4, s[40:43], s60 offen
        buffer_load_dwordx4 v[252:255], v4, s[40:43], s60 offen offset:32
        v_and_b32 v5, 31, v1
        v_lshlrev_b32 v5, 2, v5
        buffer_load_dword v15, v5, s[40:43], s60 offen
        """)
        NX = 9
    else:
        for r in range(4):
            a(f"v_mov_b32 v{8 + r}, 0\nv_mov_b32 v{ONES + r}, s50")
    dstamp(a, "qkv", 1)
    for k in range(4):
        if not raw:
            a(f"s_waitcnt vmcnt({(3 - k) * 2 + NX})")
        else:
            a(f"s_waitcnt lgkmcnt({(3 - k) * 6})") if False else None
        if k in (0, 3): dstamp(a, "qkv", 2 + (k == 3))
        for n in range(2):
            for t in range(2):
                c = vr(ACC + (n * 2 + t) * 16, 16)
                a(f"v_mfma_f32_32x32x16_bf16 {c}, {vr(R_WQA + (n * 4 + k) * 4)}, {vr(B + k * 8 + t * 4)}, {'0' if k == 0 else c}")
            if raw:
                c = vr(CQ[n], 16)
                a(f"v_mfma_f32_32x32x16_bf16 {c}, {vr(ONES)}, {vr(R_WQA + (n * 4 + k) * 4)}, {'0' if k == 0 else c}")
        if raw:
            for t in range(2):
                for r in range(4):
                    b = B + k * 8 + t * 4 + r
                    a(f"v_dot2_f32_bf16 v{8 + 2 * t}, v{b}, s50, v{8 + 2 * t}")
                    a(f"v_dot2_f32_bf16 v{9 + 2 * t}, v{b}, v{b}, v{9 + 2 * t}")
    lend = a.lab("kve")
    a(f"s_cmp_ge_u32 s6, 4\ns_cbranch_scc1 {lend}")
    if raw:
        for k in range(4):
            c = vr(CK, 16)
            a(f"v_mfma_f32_32x32x16_bf16 {c}, {vr(ONES)}, {vr(R_WKV + k * 4)}, {'0' if k == 0 else c}")
    for m in range(4):
        t = m & 1
        lnext = a.lab("kvn")
        a(f"s_cmp_lg_u32 s6, {m}\ns_cbranch_scc1 {lnext}")
        for k in range(4):
            w, x = vr(R_WKV + k * 4), vr(B + k * 8 + t * 4)
            c = vr(KV, 16)
            if m < 2:
                a(f"v_mfma_f32_32x32x16_bf16 {c}, {w}, {x}, {'0' if k == 0 else c}")
            else:
                a(f"v_mfma_f32_32x32x16_bf16 {c}, {x}, {w}, {'0' if k == 0 else c}")
        a(f"s_branch {lend}\n{lnext}:")
    a(f"{lend}:")
    if not raw:
        a(f"""
        s_waitcnt vmcnt(5)
        v_add_f32 v8, v8, v200
        v_add_f32 v9, v9, v201
        v_add_f32 v10, v10, v202
        v_add_f32 v11, v11, v203
        """)
    else:
        a.nop(4)
    a(f"""
    v_mov_b32 v4, v8
    v_mov_b32 v5, v9
    v_mov_b32 v6, v10
    v_mov_b32 v7, v11
    s_lshl_b32 s60, s3, 9
    v_and_b32 v14, 31, v1
    v_permlane32_swap_b32 v8, v4
    v_permlane32_swap_b32 v9, v5
    v_permlane32_swap_b32 v10, v6
    v_permlane32_swap_b32 v11, v7
    v_lshlrev_b32 v14, 4, v14
    v_add_u32 v14, {LDS_STAT}, v14
    v_add_f32 v8, v8, v4
    v_add_f32 v9, v9, v5
    v_add_f32 v10, v10, v6
    v_add_f32 v11, v11, v7
    v_add_u32 v4, s60, v14
    """)
    a.nop(6)
    dstamp(a, "qkv", 4)
    if raw:
        after_bar(a)
        a("s_barrier")
    a("ds_write_b128 v4, v[8:11]")
    if raw:
        a(f"""
        s_mul_i32 s60, s3, 384
        v_and_b32 v5, 31, v1
        v_lshlrev_b32 v5, 2, v5
        v_add_u32 v5, s60, v5
        v_add_u32 v5, {LDS_CS}, v5
        ds_write_b32 v5, v{CQ[0]}
        ds_write_b32 v5, v{CQ[1]} offset:128
        ds_write_b32 v5, v{CK} offset:256
        """)
    reduce8_write(a)
    l1, l1b = a.lab("kvw"), a.lab("kvx")
    a(f"""
    s_cmp_ge_u32 s6, 4
    s_cbranch_scc1 {l1}
    s_mul_i32 s60, s3, {16384 + 2048}
    v_add_u32 v2, s60, v3
    ds_write_b128 v2, {vr(KV)} offset:{LDS_RED}
    ds_write_b128 v2, {vr(KV + 4)} offset:{LDS_RED + 1024}
    s_cmp_lt_u32 s6, 2
    s_cbranch_scc1 {l1}
    s_lshl_b32 s60, s3, 11
    v_add_u32 v2, s60, v3
    v_add_u32 v2, {LDS_KV2}, v2
    ds_write_b128 v2, {vr(KV + 8)}
    ds_write_b128 v2, {vr(KV + 12)} offset:1024
    {l1}:
    """)
    dstamp(a, "qkv", 5)
    a("""
    s_waitcnt lgkmcnt(0)
    s_barrier
    """)
    dstamp(a, "qkv", 6)
    T = 208
    for w in range(8):
        a(f"ds_read_b128 {vr(T + w * 4)}, v14 offset:{w * 512}")
    a("s_waitcnt lgkmcnt(0)")
    def mid_stats(a):
        for w in range(1, 8):
            for r in range(4):
                a(f"v_add_f32 v{T + r}, v{T + r}, v{T + w * 4 + r}")
        stats_finish(a, T, T + 1, 72 + 160, 73 + 160, 12, 13)
        stats_finish(a, T + 2, T + 3, 74 + 160, 75 + 160, 12, 13)
    M0, R0, M1, R1 = 232, 233, 234, 235
    reduce8_read(a, [mid_stats])
    dstamp(a, "qkv", 7)
    if raw:
        a(f"""
        s_lshr_b32 s60, s3, 2
        s_lshl_b32 s60, s60, 7
        s_and_b32 s61, s3, 1
        s_lshl_b32 s61, s61, 6
        s_add_u32 s60, s60, s61
        v_lshrrev_b32 v2, 5, v1
        v_lshlrev_b32 v2, 4, v2
        v_add_u32 v2, {LDS_CS}, v2
        v_add_u32 v0, s60, v2
        """)
        for w in range(8):
            a(f"ds_read_b128 {vr(16 + w * 8)}, v0 offset:{w * 384}\nds_read_b128 {vr(20 + w * 8)}, v0 offset:{w * 384 + 32}")
        a("s_waitcnt lgkmcnt(0)")
        for r in range(8):
            a(f"v_add_f32 v{240 + r}, v{16 + r}, v{24 + r}")
        for w in range(2, 8):
            for r in range(8):
                a(f"v_add_f32 v{240 + r}, v{240 + r}, v{16 + w * 8 + r}")
    dstamp(a, "qkv", 8)
    l2 = a.lab("qt")
    a(f"""
    v_mov_b32 v12, v{M0}
    v_mov_b32 v13, v{R0}
    s_bitcmp0_b32 s3, 1
    s_cbranch_scc1 {l2}
    v_mov_b32 v12, v{M1}
    v_mov_b32 v13, v{R1}
    {l2}:
    v_mul_f32 v13, 0x3eb8aa3b, v13
    """)
    if not raw:
        a("s_waitcnt vmcnt(0)")
    for r in range(8):
        a(f"v_fma_f32 v{4 + r}, -v12, v{240 + r}, v{4 + r}")
        a(f"v_mul_f32 v{4 + r}, v13, v{4 + r}")
    for r in range(4):
        a(f"v_cvt_pk_bf16_f32 v{64 + r}, v{4 + 2 * r}, v{5 + 2 * r}")
    a(f"buffer_store_dwordx4 v[64:67], v3, s[40:43], s58 offen")
    dstamp(a, "qkv", 9)
    fin = a.lab("kvfin")
    lv = a.lab("kvv")
    a(f"""
    s_cmp_ge_u32 s6, 4
    s_cbranch_scc1 {fin}
    s_cmp_ge_u32 s3, 2
    s_cbranch_scc1 {fin}
    s_and_b32 s7, s6, 1
    s_lshl_b32 s8, s5, 1
    s_add_u32 s8, s8, s7
    s_cmp_eq_u32 s3, 1
    s_cselect_b32 s9, 1, 0
    s_cmp_lt_u32 s6, 2
    s_cselect_b32 s10, 1, 0
    s_and_b32 s10, s10, s9
    s_cmp_lg_u32 s10, 0
    s_cbranch_scc1 {fin}
    """)
    la, lb = a.lab("ka"), a.lab("kb")
    a(f"""
    s_cmp_eq_u32 s3, 1
    s_cbranch_scc1 {la}
    v_add_u32 v2, {LDS_RED}, v3
    s_mov_b32 s11, {16384 + 2048}
    s_branch {lb}
    {la}:
    v_add_u32 v2, {LDS_KV2}, v3
    s_mov_b32 s11, 2048
    {lb}:
    """)
    for w in range(8):
        a(f"ds_read_b128 {vr(144 + w * 8)}, v2\nds_read_b128 {vr(148 + w * 8)}, v2 offset:1024\nv_add_u32 v2, s11, v2")
    if raw:
        a(f"""
        v_lshrrev_b32 v2, 5, v1
        v_lshlrev_b32 v2, 4, v2
        v_add_u32 v2, {LDS_CS + 256}, v2
        v_and_b32 v0, 15, v1
        v_lshlrev_b32 v0, 2, v0
        v_add_u32 v0, {LDS_CS + 256}, v0
        s_waitcnt lgkmcnt(0)
        """)
        for w in range(8):
            a(f"ds_read_b128 {vr(16 + w * 8)}, v2 offset:{w * 384}\nds_read_b128 {vr(20 + w * 8)}, v2 offset:{w * 384 + 32}")
        a("s_waitcnt lgkmcnt(0)")
        for w in range(8):
            a(f"ds_read_b32 v{80 + w}, v0 offset:{w * 384}")
        for r in range(8):
            a(f"v_add_f32 v{248 + r}, v{16 + r}, v{24 + r}")
        for w in range(2, 8):
            for r in range(8):
                a(f"v_add_f32 v{248 + r}, v{248 + r}, v{16 + w * 8 + r}")
        a("s_waitcnt lgkmcnt(0)\nv_add_f32 v15, v80, v81")
        for w in range(2, 8):
            a(f"v_add_f32 v15, v15, v{80 + w}")
    a("s_waitcnt lgkmcnt(0)")
    for w in range(1, 8):
        for r in range(8):
            a(f"v_add_f32 v{144 + r}, v{144 + r}, v{144 + w * 8 + r}")
    l3 = a.lab("kt")
    a(f"""
    s_cmp_eq_u32 s7, 0
    s_cbranch_scc1 {l3}
    v_mov_b32 v{M0}, v{M1}
    v_mov_b32 v{R0}, v{R1}
    {l3}:
    s_cmp_ge_u32 s6, 2
    s_cbranch_scc1 {lv}
    """)
    for r in range(8):
        a(f"v_fma_f32 v{144 + r}, -v{M0}, v{248 + r}, v{144 + r}")
        a(f"v_mul_f32 v{144 + r}, v{R0}, v{144 + r}")
    for r in range(4):
        a(f"v_cvt_pk_bf16_f32 v{160 + r}, v{144 + 2 * r}, v{145 + 2 * r}")
    a(f"""
    s_lshl_b32 s9, s8, 10
    s_add_u32 s9, s9, {kf}
    buffer_store_dwordx4 v[160:163], v3, s[40:43], s9 offen
    v_mov_b32 v8, 0
    """)
    for r in range(4):
        a(f"v_dot2_f32_bf16 v8, v{160 + r}, v{160 + r}, v8")
    a(f"""
    s_nop 3
    v_mov_b32 v9, v8
    s_nop 1
    v_permlane32_swap_b32 v8, v9
    s_nop 1
    v_add_f32 v8, v8, v9
    s_nop 1
    v_max_f32_dpp v8, v8, v8 row_ror:8 row_mask:0xf bank_mask:0xf
    s_nop 1
    v_max_f32_dpp v8, v8, v8 row_ror:4 row_mask:0xf bank_mask:0xf
    s_nop 1
    v_max_f32_dpp v8, v8, v8 row_ror:2 row_mask:0xf bank_mask:0xf
    s_nop 1
    v_max_f32_dpp v8, v8, v8 row_ror:1 row_mask:0xf bank_mask:0xf
    s_nop 1
    v_mov_b32 v9, v8
    s_nop 1
    v_permlane16_swap_b32 v8, v9
    s_nop 1
    v_max_f32 v8, v8, v9
    s_lshl_b32 s9, s8, 2
    s_add_u32 s9, s9, {kn}
    v_mov_b32 v9, 0
    s_mov_b64 exec, 1
    buffer_store_dword v8, v9, s[40:43], s9 offen
    s_mov_b64 exec, -1
    s_branch {fin}
    {lv}:
    """)
    a(f"""
    s_lshl_b32 s60, s3, 8
    v_and_b32 v4, 31, v1
    v_lshlrev_b32 v4, 2, v4
    v_add_u32 v4, s60, v4
    v_add_u32 v4, {LDS_PRIV}, v4
    ds_write_b32 v4, v{M0}
    ds_write_b32 v4, v{R0} offset:128
    v_lshrrev_b32 v5, 5, v1
    v_lshlrev_b32 v5, 4, v5
    s_lshl_b32 s61, s3, 6
    s_add_u32 s60, s60, s61
    v_add_u32 v5, s60, v5
    v_add_u32 v5, {LDS_PRIV}, v5
    ds_read_b128 v[160:163], v5
    ds_read_b128 v[164:167], v5 offset:32
    ds_read_b128 v[168:171], v5 offset:128
    ds_read_b128 v[172:175], v5 offset:160
    s_waitcnt lgkmcnt(0)
    """)
    for r in range(8):
        a(f"v_fma_f32 v{144 + r}, -v{160 + r}, v15, v{144 + r}")
        a(f"v_mul_f32 v{144 + r}, v{168 + r}, v{144 + r}")
    for r in range(4):
        a(f"v_cvt_pk_bf16_f32 v{176 + r}, v{144 + 2 * r}, v{145 + 2 * r}")
    a(f"""
    v_and_b32 v4, 15, v1
    v_lshrrev_b32 v5, 5, v1
    v_lshl_add_u32 v4, v5, 4, v4
    v_lshlrev_b32 v4, 4, v4
    s_lshl_b32 s9, s8, 1
    s_add_u32 s9, s9, s3
    s_mul_i32 s9, s9, {VSTEP}
    s_add_u32 s9, s9, {vf}
    s_mov_b32 s12, 0xffff0000
    s_mov_b32 s13, 0xffff0000
    s_mov_b64 exec, s[12:13]
    buffer_store_dwordx4 v[176:179], v4, s[40:43], s9 offen
    s_mov_b64 exec, 3
    v_cmp_eq_u32 vcc, 0, v1
    v_mov_b32 v180, 0
    v_mov_b32 v181, s50
    s_nop 1
    v_cndmask_b32 v180, v180, v181, vcc
    v_mov_b32 v181, v180
    v_mov_b32 v182, v180
    v_mov_b32 v183, v180
    buffer_store_dwordx4 v[180:183], v3, s[40:43], s9 offen offset:512
    s_mov_b64 exec, -1
    {fin}:
    """)

LDS_KV2 = LDS_STAT + 8192
LDS_PRIV = LDS_KV2 + 16384
LDS_TOTAL = LDS_PRIV + 1024

def gen_pre():
    a = Asm("pre")
    name = "pre_kernel"
    begin(a, name, 256)
    group_map(a)
    XIMG, WIMG = 0, 65536
    def pb(i):
        return (80, 128)[i // 4] + (i % 4) * 4
    PF = 208
    LDS_PCS = LDS_STAT + 4096 + 3072
    srd(a, 64, P_X, 2048 * 1024)
    srd(a, 72, P_WQ, 512 * 1024)
    a(f"""
    v_lshrrev_b32 v4, 3, v1
    v_and_b32 v5, 7, v1
    s_mov_b32 s55, 255
    s_mov_b32 s59, 0
    v_mov_b32 v207, 0
    s_mov_b32 s62, 0
    s_mov_b32 s63, 0
    """)
    srd(a, 68, P_WQ, 512 * 1024)
    l_np, l_o, l_1, l_2, l_x, l_ld = a.lab("np"), a.lab("ro"), a.lab("r1"), a.lab("r2"), a.lab("rx"), a.lab("rl")
    a(f"""
    s_cmp_lt_u32 s6, 4
    s_cbranch_scc1 {l_np}
    s_lshl_b32 s55, s5, 2
    s_add_u32 s55, s55, s6
    s_sub_u32 s55, s55, 4
    s_cmp_ge_u32 s55, 72
    s_cbranch_scc1 {l_np}
    s_lshl_b32 s14, s3, 6
    s_mov_b32 s49, 32
    s_cmp_ge_u32 s55, 44
    s_cbranch_scc1 {l_2}
    s_cmp_ge_u32 s55, 16
    s_cbranch_scc1 {l_1}
    s_cmp_ge_u32 s55, 8
    s_cbranch_scc1 {l_o}
    """)
    srd(a, 68, P_WQ, 512 * 1024)
    a(f"""
    s_mov_b32 s13, 1024
    s_lshl_b32 s15, s55, 6
    s_mov_b32 s48, {WQ_F}
    s_mov_b32 s59, {CSQ}
    s_branch {l_ld}
    {l_o}:
    """)
    srd(a, 68, P_WO, 512 * 1024)
    a(f"""
    s_mov_b32 s13, 1024
    s_sub_u32 s15, s55, 8
    s_lshl_b32 s15, s15, 6
    s_mov_b32 s48, {WO_F}
    s_branch {l_ld}
    {l_1}:
    """)
    srd(a, 68, P_W1, 512 * 3584)
    a(f"""
    s_mov_b32 s13, 3584
    s_sub_u32 s15, s55, 16
    s_lshl_b32 s15, s15, 6
    s_mov_b32 s48, {W1_F}
    s_mov_b32 s59, {CS1}
    s_branch {l_ld}
    {l_2}:
    """)
    srd(a, 68, P_W2, 1792 * 1024)
    a(f"""
    s_mov_b32 s13, 1024
    s_sub_u32 s60, s55, 44
    s_lshl_b32 s60, s60, 3
    s_add_u32 s60, s60, s3
    s_mov_b32 s61, 153391690
    s_mul_hi_u32 s15, s60, s61
    s_mul_i32 s61, s15, 28
    s_sub_u32 s14, s60, s61
    s_lshl_b32 s14, s14, 6
    s_lshl_b32 s15, s15, 6
    s_mov_b32 s48, {W2_F}
    s_mov_b32 s49, 112
    {l_ld}:
    v_mul_u32_u24 v6, s13, v4
    v_lshl_add_u32 v6, v5, 4, v6
    s_mul_i32 s60, s14, s13
    s_lshl_b32 s61, s15, 1
    s_add_u32 s60, s60, s61
    s_lshl_b32 s63, s13, 3
    s_mov_b32 s62, s60
    v_mov_b32 v207, v6
    """)
    a(f"{l_np}:")
    lt1, lt2 = a.lab("t1"), a.lab("t2")
    a(f"""
    v_xor_b32 v6, v5, v4
    v_lshlrev_b32 v6, 4, v6
    v_lshl_add_u32 v6, v4, 10, v6
    v_lshlrev_b32 v7, 4, v5
    v_lshl_add_u32 v7, v4, 10, v7
    s_lshl_b32 s8, s5, 16
    s_lshl_b32 s9, s3, 7
    s_add_u32 s8, s8, s9
    s_lshl_b32 s10, s3, 13
    s_lshl_b32 s11, s3, 16
    s_lshl_b32 s9, s6, 7
    s_add_u32 s11, s11, s9
    v_lshlrev_b32 v8, 7, v1
    s_cmp_ge_u32 s3, 3
    s_cbranch_scc1 {lt2}
    s_cmp_eq_u32 s3, 0
    s_cbranch_scc1 {lt1}
    s_lshr_b32 s12, s2, 3
    s_lshl_b32 s12, s12, 1
    s_add_u32 s12, s12, s3
    s_sub_u32 s12, s12, 1
    s_lshl_b32 s12, s12, 13
    buffer_load_dword v9, v8, s[72:75], s12 offen
    s_branch {lt2}
    {lt1}:
    s_lshl_b32 s12, s5, 16
    s_lshl_b32 s9, s6, 13
    s_add_u32 s12, s12, s9
    buffer_load_dword v9, v8, s[64:67], s12 offen
    {lt2}:
    s_waitcnt vmcnt(0)
    s_barrier
    """)
    for i in range(8):
        a(f"""
        s_add_u32 m0, s10, {XIMG + i * 1024}
        s_add_u32 s12, s8, {i * 8192}
        buffer_load_dwordx4 v6, s[64:67], s12 offen lds
        s_add_u32 m0, s10, {WIMG + i * 1024}
        s_add_u32 s12, s11, {i * 8192}
        buffer_load_dwordx4 v7, s[72:75], s12 offen lds
        """)
    dstamp(a, "pre", 0)
    a(f"""
    v_lshrrev_b32 v5, 5, v1
    v_lshrrev_b32 v8, 4, v1
    v_and_b32 v9, 1, v8
    v_and_b32 v10, 15, v1
    v_lshrrev_b32 v11, 2, v10
    v_and_b32 v10, 3, v10
    s_lshl_b32 s12, s3, 11
    s_add_u32 s12, s12, {LDS_KV2}
    v_mov_b32 v14, 0
    v_mov_b32 v15, 0
    """)
    l_m4, l_go, l_v, l_kv, l_z2 = (a.lab(x) for x in ("m4", "go", "wv", "kvd", "z2"))
    a(f"""
    s_cmp_ge_u32 s6, 4
    s_cbranch_scc1 {l_m4}
    s_cmp_ge_u32 s6, 2
    s_cbranch_scc1 {l_v}
    """)
    srd(a, 68, P_WK, 512 * 32)
    a(f"s_branch {l_kv}\n{l_v}:")
    srd(a, 68, P_WV, 512 * 32)
    a(f"""
    {l_kv}:
    s_lshl_b32 s9, s3, 11
    s_mov_b32 m0, s12
    s_nop 0
    buffer_load_dwordx4 v3, s[68:71], s9 offen lds
    buffer_load_dwordx4 v3, s[68:71], s9 offen offset:1024 lds
    {l_z2}:
    s_waitcnt vmcnt(0)
    s_branch {l_go}
    {l_m4}:
    s_cmp_ge_u32 s55, 72
    s_cbranch_scc1 {l_z2}
    """)
    for i in range(8):
        a(f"buffer_load_dwordx4 {vr(pb(i))}, v207, s[68:71], s62 offen\ns_add_u32 s62, s62, s63")
    a(f"""
    s_waitcnt vmcnt(8)
    {l_go}:
    s_mov_b32 s63, s12
    """)
    def prep_share(a):
        l_e, l_z, l_kvp, l_cs = (a.lab(x) for x in ("pe", "pz", "pkv", "pcs"))
        a(f"""
        s_cmp_ge_u32 s55, 74
        s_cbranch_scc1 {l_e}
        v_lshrrev_b32 v196, 5, v1
        v_lshrrev_b32 v197, 4, v1
        v_and_b32 v197, 1, v197
        v_and_b32 v198, 15, v1
        v_lshrrev_b32 v199, 2, v198
        v_and_b32 v198, 3, v198
        v_lshl_add_u32 v200, v196, 2, v199
        v_add_u32 v202, s63, v3
        v_mov_b32 v204, 0
        v_mov_b32 v205, 0
        s_cmp_eq_u32 s55, 73
        s_cbranch_scc1 {l_z}
        s_cmp_eq_u32 s55, 72
        s_cbranch_scc1 {l_kvp}
        v_lshlrev_b32 v201, 7, v200
        v_lshl_add_u32 v201, v197, 5, v201
        v_lshl_add_u32 v201, v198, 3, v201
        v_add_u32 v201, s63, v201
        s_lshr_b32 s60, s15, 5
        s_mul_i32 s60, s60, s49
        s_lshr_b32 s61, s14, 4
        s_add_u32 s60, s60, s61
        s_lshl_b32 s60, s60, 10
        s_add_u32 s60, s60, s48
        s_lshl_b32 s61, s49, 10
        s_add_u32 s61, s61, s60
        s_waitcnt vmcnt(0)
        """)
        for k in range(4):
            a(f"ds_write_b128 v202, {vr(pb(2 * k))}\nds_write_b128 v202, {vr(pb(2 * k + 1))} offset:1024")
            for n in range(2):
                d = PF + (n * 4 + k) * 4
                a(f"ds_read_b64_tr_b16 v[{d}:{d + 1}], v201 offset:{n * 64}")
                a(f"ds_read_b64_tr_b16 v[{d + 2}:{d + 3}], v201 offset:{n * 64 + 1024}")
            a("s_waitcnt lgkmcnt(0)")
            for n in range(2):
                a(f"buffer_store_dwordx4 {vr(PF + (n * 4 + k) * 4)}, v3, s[40:43], s{60 + n} offen offset:{k * 1024}")
        a(f"""
        s_cmp_eq_u32 s59, 0
        s_cbranch_scc1 {l_e}
        """)
        for n in range(2):
            for i in range(16):
                a(f"v_dot2_f32_bf16 v{204 + n}, v{PF + n * 16 + i}, s50, v{204 + n}")
        a(f"""
        {l_cs}:
        s_nop 3
        v_mov_b32 v200, v204
        v_mov_b32 v201, v205
        v_and_b32 v196, 31, v1
        v_lshlrev_b32 v196, 2, v196
        v_permlane32_swap_b32 v204, v200
        v_permlane32_swap_b32 v205, v201
        v_add_u32 v196, s63, v196
        s_nop 0
        v_add_f32 v204, v204, v200
        v_add_f32 v205, v205, v201
        ds_write_b32 v196, v204
        ds_write_b32 v196, v205 offset:128
        s_branch {l_e}
        {l_kvp}:
        """)
        srd(a, 68, P_WK, 512 * 32)
        srd(a, 76, P_WV, 512 * 32)
        a(f"""
        v_lshlrev_b32 v201, 5, v200
        v_lshl_add_u32 v201, v197, 10, v201
        v_lshl_add_u32 v201, v198, 3, v201
        v_add_u32 v201, s63, v201
        s_lshl_b32 s60, s3, 12
        s_add_u32 s60, s60, {WKV_F}
        s_mov_b32 s59, {CSKV}
        s_mov_b32 s15, 0
        s_lshl_b32 s9, s3, 11
        buffer_load_dwordx4 {vr(pb(0))}, v3, s[68:71], s9 offen
        buffer_load_dwordx4 {vr(pb(1))}, v3, s[76:79], s9 offen
        buffer_load_dwordx4 {vr(pb(2))}, v3, s[68:71], s9 offen offset:1024
        buffer_load_dwordx4 {vr(pb(3))}, v3, s[76:79], s9 offen offset:1024
        s_waitcnt vmcnt(0)
        """)
        for h in range(2):
            a(f"ds_write_b128 v202, {vr(pb(2 * h))}\nds_write_b128 v202, {vr(pb(2 * h + 1))} offset:1024")
            for k in range(2):
                d = PF + (h * 2 + k) * 4
                a(f"ds_read_b64_tr_b16 v[{d}:{d + 1}], v201 offset:{k * 512}")
                a(f"ds_read_b64_tr_b16 v[{d + 2}:{d + 3}], v201 offset:{k * 512 + 256}")
            a("s_waitcnt lgkmcnt(0)")
        for k in range(4):
            a(f"buffer_store_dwordx4 {vr(PF + k * 4)}, v3, s[40:43], s60 offen offset:{k * 1024}")
        for i in range(16):
            a(f"v_dot2_f32_bf16 v204, v{PF + i}, s50, v204")
        a(f"""
        s_branch {l_cs}
        {l_z}:
        v_mov_b32 v206, 0
        v_mov_b32 v207, 0
        s_mul_i32 s60, s3, 6144
        s_add_u32 s60, s60, {FLAGS}
        s_add_u32 s61, s60, 4096
        """)
        for i in range(4):
            a(f"buffer_store_dwordx4 v[204:207], v3, s[40:43], s60 offen offset:{i * 1024}")
        for i in range(2):
            a(f"buffer_store_dwordx4 v[204:207], v3, s[40:43], s61 offen offset:{i * 1024}")
        a(f"""
        {l_e}:
        s_waitcnt lgkmcnt(0)
        """)
    dstamp(a, "pre", 1)
    a(f"""
    v_and_b32 v4, 31, v1
    v_and_b32 v6, 7, v1
    v_lshlrev_b32 v7, 7, v4
    v_add_u32 v7, s10, v7
    """)
    for k in range(4):
        a(f"""
        v_add_u32 v8, {2 * k}, v5
        v_xor_b32 v8, v8, v6
        v_lshl_add_u32 v8, v8, 4, v7
        ds_read_b128 {vr(208 + k * 8)}, v8 offset:{XIMG}
        ds_read_b128 {vr(208 + k * 8 + 4)}, v8 offset:{XIMG + 4096}
        """)
    a(f"""
    v_lshl_add_u32 v12, v5, 3, v11
    v_lshlrev_b32 v13, 7, v12
    v_lshl_add_u32 v13, v9, 5, v13
    v_lshl_add_u32 v13, v10, 3, v13
    v_add_u32 v13, s10, v13
    v_add_u32 v13, {WIMG}, v13
    v_lshlrev_b32 v14, 5, v12
    v_lshl_add_u32 v14, v10, 3, v14
    v_add_u32 v14, s12, v14
    s_waitcnt lgkmcnt(0)
    """)
    for n in range(2):
        for k in range(4):
            d = R_WQA + (n * 4 + k) * 4
            a(f"ds_read_b64_tr_b16 v[{d}:{d + 1}], v13 offset:{k * 2048 + n * 64}")
            a(f"ds_read_b64_tr_b16 v[{d + 2}:{d + 3}], v13 offset:{k * 2048 + n * 64 + 512}")
        a("s_waitcnt lgkmcnt(0)")
    l_nokv = a.lab("nokv")
    a(f"s_cmp_ge_u32 s6, 4\ns_cbranch_scc1 {l_nokv}")
    for k in range(4):
        d = R_WKV + k * 4
        a(f"ds_read_b64_tr_b16 v[{d}:{d + 1}], v14 offset:{k * 512}")
        a(f"ds_read_b64_tr_b16 v[{d + 2}:{d + 3}], v14 offset:{k * 512 + 128}")
    a(f"s_waitcnt lgkmcnt(0)\n{l_nokv}:")
    dstamp(a, "pre", 2)
    phase_qkv(a, 0, True, prep_share)
    dstamp(a, "pre", 3)
    l_end = a.lab("pend")
    a(f"""
    s_cmp_eq_u32 s59, 0
    s_cbranch_scc1 {l_end}
    s_cmp_lg_u32 s3, 7
    s_cbranch_scc1 {l_end}
    v_lshlrev_b32 v2, 2, v1
    v_add_u32 v4, {LDS_KV2}, v2
    """)
    for i in range(8):
        a(f"ds_read_b32 v{16 + i}, v4 offset:{i * 2048}")
    a("s_waitcnt lgkmcnt(0)")
    for i in range(1, 8):
        a(f"v_add_f32 v16, v16, v{16 + i}")
    a(f"""
    s_lshl_b32 s60, s15, 2
    s_add_u32 s60, s60, s59
    buffer_store_dword v16, v2, s[40:43], s60 offen
    {l_end}:
    """)
    dstamp(a, "pre", 4)
    if INSTR: a("s_waitcnt vmcnt(0)")
    dstamp(a, "pre", 5)
    stamp_flush(a, 15)
    end(a, name)
    KERNELS.append((name, a.text(), 256, 100))
    return f"; @launch kernel={name} grid=(256,1,1) block=(512,1,1) lds={LDS_TOTAL}"

def gen_layer(layer):
    a = Asm(f"l{layer}")
    name = f"layer{layer}_kernel"
    begin(a, name, 256)
    group_map(a)
    place_register(a, layer)
    pf_att = [(lambda a, i=i: pf_wo(a, i)) for i in range(8)] + [(lambda a, k=k: pf_w1(a, k)) for k in range(28)]
    a("v_lshlrev_b32 v100, 7, v1")
    pf_att += [(lambda a: warm(a, 45, 28 * KB, 32))]
    for n in range(2):
        pf_att += [(lambda a, n=n: warm(a, 46, n * 112 * KB, 64)), (lambda a, n=n: warm(a, 46, n * 112 * KB + 8192, 48))]
    if layer == 0:
        pf_att += [(lambda a: warm(a, 47, 0, 32)), (lambda a: warm(a, 47, 32768, 32))]
    a("v_mov_b32 v103, 0")
    pf_att += [(lambda a: a("buffer_load_dword v102, v103, s[40:43], s54 offen sc1"))]
    phase_att(a, layer, pf_att)
    stamp(a, 2)
    signal(a, layer, 0)
    stamp(a, 3)
    wait_flag(a, layer, 0)
    stamp(a, 4)
    NW2_WO = 6
    phase_wo(a, layer, [(lambda a, k=k: pf_w1(a, k)) for k in range(28, 32)] + [(lambda a, f=f: pf_w2(a, f)) for f in range(NW2_WO)])
    stamp(a, 5)
    signal(a, layer, 1)
    dstamp(a, "wo", 11)
    wait_flag(a, layer, 1)
    dstamp(a, "wo", 12)
    stamp(a, 6)
    phase_ffn1(a, layer, [(f, (lambda a, f=f: pf_w2(a, f))) for f in range(NW2_WO, 28)])
    stamp(a, 9)
    signal(a, layer, 2)
    wait_flag(a, layer, 2)
    stamp(a, 10)
    if layer == 0:
        pfq = [(lambda a, i=i: pf_wq(a, i)) for i in range(8)] + [(lambda a, k=k: pf_wkv(a, k)) for k in range(4)]
    else:
        pfq = []
    phase_ffn2(a, layer, pfq)
    stamp(a, 11)
    if layer == 0:
        signal(a, layer, 3)
        wait_flag(a, layer, 3)
        stamp(a, 12)
        phase_qkv(a, 1, False)
        dstamp(a, "qkv", 10)
        stamp(a, 13)
    if INSTR:
        a("s_waitcnt vmcnt(0)")
    stamp(a, 14)
    stamp_flush(a, 15)
    end(a, name)
    KERNELS.append((name, a.text(), 256, 100))
    return f"; @launch kernel={name} grid=(256,1,1) block=(512,1,1) lds={LDS_TOTAL}"

def main():
    launches = [gen_pre(), gen_layer(0), gen_layer(1)]
    hdr = open("interleave_layers__grouped_kv_mqa__dense_activation_relu__prompt.s.ref").read().split("; Override launch")[0]
    s = hdr + "\n".join(launches) + "\n"
    s += '.amdgcn_target "amdgcn-amd-amdhsa--gfx950"\n.text\n'
    for n, t, nv, ns in KERNELS:
        s += f".globl {n}\n.type {n},@function\n" + t
    s += '.section .rodata,"a"\n'
    for n, t, nv, ns in KERNELS:
        s += f""".p2align 6
.amdhsa_kernel {n}
  .amdhsa_next_free_vgpr {nv}
  .amdhsa_next_free_sgpr {100 if INSTR else ns}
  .amdhsa_accum_offset {(nv + 3) // 4 * 4}
  .amdhsa_group_segment_fixed_size 0
  .amdhsa_kernarg_size 88
  .amdhsa_user_sgpr_count 2
  .amdhsa_user_sgpr_kernarg_segment_ptr 1
  .amdhsa_system_sgpr_workgroup_id_x 1
.end_amdhsa_kernel
"""
    open(OUT, "w").write(s)

if __name__ == "__main__":
    main()
```

```python
import sys, os

OUT = os.environ.get("OUTS", "interleave_layers__grouped_kv_mqa__dense_activation_relu__prompt.s")
INSTR = os.environ.get("INSTR", "0") == "1"
INSTR_WG = int(os.environ.get("INSTR_WG", "0"))
INSTR_WAVE = int(os.environ.get("INSTR_WAVE", "0"))

KB = 1024
VSTEP = 544
VT_SZ = 128 * VSTEP
FLAGS = 0
KN2 = FLAGS + 24 * KB
K_F = KN2 + 4 * KB
VT_F = K_F + 64 * KB
XIN_F = VT_F + 68 * KB
X1_F = XIN_F + 2048 * KB
Q_F = X1_F + 2048 * KB
O_F = Q_F + 2048 * KB
H_F = O_F + 2048 * KB
STX1 = H_F + 7168 * KB
STXIN = STX1 + 512 * KB
ARENA = STXIN + 512 * KB
WQ_F = 2 * ARENA
WKV_F = WQ_F + 512 * KB
WO_F = WKV_F + 32 * KB
W1_F = WO_F + 512 * KB
W2_F = W1_F + 1792 * KB
CSQ = W2_F + 1792 * KB
CSKV = CSQ + 2 * KB
CS1 = CSKV + 1 * KB
WS_END = CS1 + 8 * KB

class Asm:
    def __init__(self, uid):
        self.lines = []
        self.uid = uid
        self.n = 0
    def __call__(self, s):
        for l in s.strip("\n").split("\n"):
            l = l.strip()
            if not l: continue
            self.lines.append(l if l.endswith(":") else "    " + l)
    def nop(self, n):
        while n > 0:
            k = min(n, 16)
            self(f"s_nop {k-1}")
            n -= k
    def lab(self, s):
        self.n += 1
        return f"L{self.uid}_{s}_{self.n}"
    def text(self):
        return "\n".join(self.lines) + "\n"

def vr(a, n=4):
    return f"v[{a}:{a+n-1}]"

KERNELS = []
P_X, P_WQ, P_WK, P_WV, P_WO, P_BX, P_W1, P_W2, P_OUT, P_DBG, P_WS = 16, 18, 20, 22, 24, 26, 28, 30, 32, 34, 36

NSTAMP = 16
DETAIL = os.environ.get("DETAIL", "")
EXP = os.environ.get("EXP", "").split(",")
def dstamp(a, ph, i):
    if INSTR and DETAIL == ph:
        a(f"s_memtime s[96:97]\ns_waitcnt lgkmcnt(0)\ns_mov_b32 s{80+i}, s96")
RT = os.environ.get("RT", "0") == "1"
def stamp(a, i):
    if not INSTR or DETAIL: return
    a(f"{'s_memrealtime' if RT else 's_memtime'} s[96:97]\ns_waitcnt lgkmcnt(0)\ns_mov_b32 s{80+i}, s96")

def stamp_flush(a, n):
    if not INSTR: return
    lab = a.lab("sf")
    a(f"""
    s_cmp_lg_u32 s2, {INSTR_WG}
    s_cbranch_scc1 {lab}
    s_cmp_lg_u32 s3, {INSTR_WAVE}
    s_cbranch_scc1 {lab}
    s_mov_b32 s64, s34
    s_and_b32 s65, s35, 0xffff
    s_mov_b32 s66, 256
    s_mov_b32 s67, 0x00020000
    s_mov_b64 exec, 1
    v_mov_b32 v2, 0
    """)
    for i in range(n):
        a(f"s_sub_u32 s96, s{80+i}, s98\nv_mov_b32 v0, s96\nbuffer_store_dword v0, v2, s[64:67], 0 offen offset:{4*i}\ns_nop 1")
    a(f"s_waitcnt vmcnt(0)\n{lab}:")

def begin(a, name, nwg):
    a(f".p2align 8\n{name}:")
    a(f"""
    s_cmp_ge_u32 s2, {nwg}
    s_cbranch_scc1 {name}_exit
    s_load_dwordx16 s[16:31], s[0:1], 0
    s_load_dwordx4 s[32:35], s[0:1], 64
    s_load_dwordx2 s[36:37], s[0:1], 80
    v_lshrrev_b32 v2, 6, v0
    v_and_b32 v1, 63, v0
    v_readfirstlane_b32 s3, v2
    v_lshlrev_b32 v3, 4, v1
    s_waitcnt lgkmcnt(0)
    s_mov_b32 s40, s36
    s_and_b32 s41, s37, 0xffff
    s_mov_b32 s42, {WS_END}
    s_mov_b32 s43, 0x00020000
    """)
    if INSTR:
        a("s_memtime s[96:97]\ns_waitcnt lgkmcnt(0)\ns_mov_b32 s98, s96")

def end(a, name):
    a(f"{name}_exit:\ns_endpgm")

def srd(a, d, sp, nbytes):
    a(f"""
    s_mov_b32 s{d}, s{sp}
    s_and_b32 s{d+1}, s{sp+1}, 0xffff
    s_mov_b32 s{d+2}, {nbytes}
    s_mov_b32 s{d+3}, 0x00020000
    """)

def bf16r(a, d, s):
    a(f"v_cvt_pk_bf16_f32 v{d}, v{s}, v{s}\nv_lshlrev_b32 v{d}, 16, v{d}")

def stats_finish(a, s1, s2, vm, vr_, t0, t1):
    a(f"""
    v_mul_f32 v{t0}, 0x3b000000, v{s1}
    v_mul_f32 v{t1}, 0x3b000000, v{s2}
    v_fma_f32 v{t1}, -v{t0}, v{t0}, v{t1}
    v_max_f32 v{t1}, 0, v{t1}
    """)
    bf16r(a, vm, t0)
    bf16r(a, t1, t1)
    a(f"v_add_f32 v{t1}, 0x3727c5ac, v{t1}")
    bf16r(a, t1, t1)
    a(f"v_sqrt_f32 v{t1}, v{t1}\ns_nop 0")
    bf16r(a, t1, t1)
    a(f"v_rcp_f32 v{vr_}, v{t1}\ns_nop 0")

ACC = 16
R_WOA = 112
R_W1A = 144
R_W1B = 80
R_W2A0 = 96
R_W2A1 = 144
R_WQA = 96
R_WKV = 128
LDS_RED = 0
LDS_STAT = 135168
LDS_TOTAL = 135168 + 8192 + 4096

def w1reg(kt):
    return R_W1A + kt * 4 if kt < 28 else R_W1B + (kt - 28) * 4
def w2reg(f):
    return R_W2A0 + f * 4 if f < 12 else R_W2A1 + (f - 12) * 4

def group_map(a):
    a(f"""
    s_and_b32 s60, s2, 7
    s_lshr_b32 s61, s2, 3
    s_lshl_b32 s5, s60, 2
    s_lshr_b32 s62, s61, 3
    s_add_u32 s5, s5, s62
    s_and_b32 s6, s61, 7
    s_mov_b32 s50, 0x3f803f80
    """)
    a(f"""
    s_lshl_b32 s60, s6, 16
    s_lshl_b32 s61, s3, 12
    s_add_u32 s60, s60, s61
    s_add_u32 s44, s60, {WO_F}
    s_add_u32 s47, s60, {WQ_F}
    s_min_u32 s51, s3, 6
    s_mul_i32 s60, s6, 7
    s_add_u32 s51, s51, s60
    s_lshl_b32 s45, s51, 15
    s_add_u32 s45, s45, {W1_F}
    s_mul_i32 s60, s6, {224 * KB}
    s_mul_i32 s61, s3, {14 * KB}
    s_add_u32 s46, s60, s61
    s_add_u32 s46, s46, {W2_F}
    """)

def pf_wo(a, i):
    n, k = i >> 2, i & 3
    if n == 1:
        a(f"s_add_u32 s60, s44, 32768\nbuffer_load_dwordx4 {vr(R_WOA + i * 4)}, v3, s[40:43], s60 offen offset:{k * 1024}")
    else:
        a(f"buffer_load_dwordx4 {vr(R_WOA + i * 4)}, v3, s[40:43], s44 offen offset:{k * 1024}")
def pf_w1(a, kt):
    a(f"s_add_u32 s60, s45, {(kt // 4) * 4096}\nbuffer_load_dwordx4 {vr(w1reg(kt))}, v3, s[40:43], s60 offen offset:{(kt % 4) * 1024}")
def pf_w2(a, f):
    k, n = f >> 1, f & 1
    a(f"s_add_u32 s60, s46, {n * 112 * KB + (k // 4) * 4096}\nbuffer_load_dwordx4 {vr(w2reg(f))}, v3, s[40:43], s60 offen offset:{(k % 4) * 1024}")
def pf_wq(a, i):
    n, k = i >> 2, i & 3
    a(f"s_add_u32 s60, s47, {n * 32768}\nbuffer_load_dwordx4 {vr(R_WQA + i * 4)}, v3, s[40:43], s60 offen offset:{k * 1024}")
def pf_wkv(a, k):
    a(f"s_lshl_b32 s60, s3, 12\ns_add_u32 s60, s60, {WKV_F}\nbuffer_load_dwordx4 {vr(R_WKV + k * 4)}, v3, s[40:43], s60 offen offset:{k * 1024}")

def warm(a, sbase, off, nlines):
    a(f"s_add_u32 s60, s{sbase}, {off}\nbuffer_load_dword v101, v100, s[40:43], s60 offen")

def place_register(a):
    lab = a.lab("pr")
    a(f"""
    s_getreg_b32 s53, hwreg(HW_REG_XCC_ID)
    s_and_b32 s53, s53, 7
    s_lshl_b32 s53, s53, 2
    s_lshl_b32 s54, s5, 7
    s_add_u32 s54, s54, {FLAGS + 4 * 4096}
    s_cmp_lg_u32 s3, 7
    s_cbranch_scc1 {lab}
    s_lshl_b32 s60, 1, s53
    v_mov_b32 v4, s60
    v_mov_b32 v5, 0
    s_mov_b64 exec, 1
    buffer_atomic_add v4, v5, s[40:43], s54 offen
    s_mov_b64 exec, -1
    {lab}:
    """)

def place_resolve(a):
    lp, ld, lc = a.lab("pp"), a.lab("pd"), a.lab("pc")
    a(f"""
    s_mov_b32 s61, 0
    s_branch {lc}
    {lp}:
    buffer_load_dword v102, v103, s[40:43], s54 offen sc1
    {lc}:
    s_waitcnt vmcnt(0)
    v_readfirstlane_b32 s62, v102
    s_and_b32 s63, s62, 0x0f0f0f0f
    s_lshr_b32 s60, s62, 4
    s_and_b32 s60, s60, 0x0f0f0f0f
    s_add_u32 s63, s63, s60
    s_mul_i32 s63, s63, 0x01010101
    s_lshr_b32 s63, s63, 24
    s_cmp_ge_u32 s63, 8
    s_cbranch_scc1 {ld}
    s_add_u32 s61, s61, 1
    s_cmp_ge_u32 s61, 0x400000
    s_cbranch_scc1 {ld}
    s_sleep 1
    s_branch {lp}
    {ld}:
    s_lshl_b32 s60, 8, s53
    s_cmp_eq_u32 s62, s60
    s_cselect_b32 s52, 1, 0
    """)

def hstore(a, stores):
    l1, l2 = a.lab("hs"), a.lab("he")
    a(f"s_cmp_eq_u32 s52, 1\ns_cbranch_scc1 {l1}")
    for st in stores:
        a(st + " sc1")
    a(f"s_branch {l2}\n{l1}:")
    for st in stores:
        a(st)
    a(f"{l2}:")

def signal(a, phase):
    lab = a.lab("sig")
    a(f"""
    s_waitcnt vmcnt(0)
    s_barrier
    s_cmp_lg_u32 s3, 7
    s_cbranch_scc1 {lab}
    s_lshl_b32 s60, s5, 7
    s_lshl_b32 s61, s6, 2
    s_add_u32 s60, s60, s61
    s_add_u32 s60, s60, {FLAGS + phase * 4096}
    v_mov_b32 v4, 1
    v_mov_b32 v5, 0
    s_mov_b64 exec, 1
    """)
    hstore(a, ["buffer_store_dword v4, v5, s[40:43], s60 offen"])
    a(f"""
    s_mov_b64 exec, -1
    {lab}:
    """)

def wait_flag(a, phase):
    lp, ld = a.lab("wp"), a.lab("wd")
    a(f"""
    s_lshl_b32 s60, s5, 7
    s_lshl_b32 s61, s3, 2
    s_add_u32 s60, s60, s61
    s_add_u32 s60, s60, {FLAGS + phase * 4096}
    v_mov_b32 v5, 0
    s_mov_b32 s61, 0
    s_mov_b64 exec, 1
    {lp}:
    buffer_load_dword v4, v5, s[40:43], s60 offen sc1
    s_waitcnt vmcnt(0)
    v_readfirstlane_b32 s62, v4
    s_cmp_eq_u32 s62, 1
    s_cbranch_scc1 {ld}
    s_add_u32 s61, s61, 1
    s_cmp_ge_u32 s61, 0x400000
    s_cbranch_scc1 {ld}
    s_sleep 1
    s_branch {lp}
    {ld}:
    s_mov_b64 exec, -1
    """)

def reduce8_write(a, spr=None):
    a(f"""
    s_lshl_b32 s60, s3, 14
    v_add_u32 v0, s60, v3
    """)
    for s in range(8):
        l1, l2 = a.lab("rw"), a.lab("rx")
        a(f"s_cmp_eq_u32 s3, {s}\ns_cbranch_scc1 {l1}")
        for g in range(2):
            a(f"ds_write_b128 v0, {vr(ACC + s * 8 + g * 4)} offset:{LDS_RED + s * 2048 + g * 1024}")
        a(f"s_branch {l2}\n{l1}:")
        for r in range(8):
            a(f"v_mov_b32 v{4 + r}, v{ACC + s * 8 + r}")
        a(f"{l2}:")
        if spr:
            spr.pop(0)(a)

def reduce8_read(a, mid=()):
    a(f"""
    s_lshl_b32 s60, s3, 11
    v_add_u32 v0, s60, v3
    """)
    for d in range(1, 8):
        a(f"""
        s_add_u32 s61, s3, {d}
        s_and_b32 s61, s61, 7
        s_lshl_b32 s61, s61, 14
        v_add_u32 v2, s61, v0
        ds_read_b128 {vr(ACC + (d - 1) * 8)}, v2 offset:{LDS_RED}
        ds_read_b128 {vr(ACC + (d - 1) * 8 + 4)}, v2 offset:{LDS_RED + 1024}
        """)
    for f in mid:
        f(a)
    for d in range(1, 8):
        a(f"s_waitcnt lgkmcnt({(7 - d) * 2})")
        for r in range(8):
            a(f"v_add_f32 v{4 + r}, v{4 + r}, v{ACC + (d - 1) * 8 + r}")

def owner_frag_off(a, sdst, base):
    a(f"""
    s_lshr_b32 s60, s3, 1
    s_and_b32 s56, s60, 1
    s_lshl_b32 s61, s5, 1
    s_add_u32 s56, s56, s61
    s_lshr_b32 s57, s3, 2
    s_lshl_b32 s61, s6, 1
    s_add_u32 s57, s57, s61
    s_lshl_b32 s57, s57, 1
    s_and_b32 s61, s3, 1
    s_add_u32 s57, s57, s61
    s_lshl_b32 s{sdst}, s56, 5
    s_add_u32 s{sdst}, s{sdst}, s57
    s_lshl_b32 s{sdst}, s{sdst}, 10
    s_add_u32 s{sdst}, s{sdst}, {base}
    """)

def resid_epilogue(a, X, sdst, final, sti=None):
    T = ACC
    for r in range(4):
        a(f"v_cvt_pk_bf16_f32 v{T + r}, v{4 + 2 * r}, v{5 + 2 * r}")
    for r in range(4):
        a(f"""
        v_lshlrev_b32 v{4 + 2 * r}, 16, v{T + r}
        v_and_b32 v{5 + 2 * r}, 0xffff0000, v{T + r}
        v_lshlrev_b32 v{T + 8}, 16, v{X + r}
        v_and_b32 v{T + 9}, 0xffff0000, v{X + r}
        v_add_f32 v{4 + 2 * r}, v{4 + 2 * r}, v{T + 8}
        v_add_f32 v{5 + 2 * r}, v{5 + 2 * r}, v{T + 9}
        """)
    for r in range(4):
        a(f"v_cvt_pk_bf16_f32 v{T + r}, v{4 + 2 * r}, v{5 + 2 * r}")
    lf1, lf2 = a.lab("fin"), a.lab("fie")
    if final is None:
        a(f"s_cmp_lg_u32 s38, 0\ns_cbranch_scc1 {lf1}")
    if True:
        for r in range(4):
            a(f"v_lshlrev_b32 v{4 + 2 * r}, 16, v{T + r}\nv_and_b32 v{5 + 2 * r}, 0xffff0000, v{T + r}")
        a(f"""
        v_add_f32 v{T + 8}, v4, v5
        v_mul_f32 v{T + 9}, v4, v4
        v_fmac_f32 v{T + 9}, v5, v5
        """)
        for r in range(2, 8):
            a(f"v_add_f32 v{T + 8}, v{T + 8}, v{4 + r}\nv_fmac_f32 v{T + 9}, v{4 + r}, v{4 + r}")
        a(f"""
        v_mov_b32 v{T + 10}, v{T + 8}
        v_mov_b32 v{T + 11}, v{T + 9}
        v_and_b32 v0, 31, v1
        v_lshlrev_b32 v0, 3, v0
        v_permlane32_swap_b32 v{T + 8}, v{T + 10}
        v_permlane32_swap_b32 v{T + 9}, v{T + 11}
        s_lshl_b32 s60, s56, 5
        s_add_u32 s60, s60, s57
        s_lshl_b32 s60, s60, 8
        s_add_u32 s60, s60, {sti}
        v_add_f32 v{T + 8}, v{T + 8}, v{T + 10}
        v_add_f32 v{T + 9}, v{T + 9}, v{T + 11}
        """)
        hstore(a, [f"buffer_store_dwordx4 {vr(T)}, v3, s[40:43], s{sdst} offen",
                   f"buffer_store_dwordx2 v[{T + 8}:{T + 9}], v0, s[40:43], s60 offen"])
    if final is None:
        a(f"s_branch {lf2}\n{lf1}:")
        srd(a, 64, P_OUT, 2048 * 1024)
        a(f"""
        v_and_b32 v0, 31, v1
        v_lshlrev_b32 v0, 10, v0
        v_lshrrev_b32 v2, 5, v1
        v_lshl_add_u32 v0, v2, 3, v0
        s_lshl_b32 s60, s56, 15
        s_lshl_b32 s61, s57, 5
        s_add_u32 s60, s60, s61
        buffer_store_dwordx2 {vr(T, 2)}, v0, s[64:67], s60 offen
        buffer_store_dwordx2 {vr(T + 2, 2)}, v0, s[64:67], s60 offen offset:16
        """)
        a(f"{lf2}:")

def phase_att(a, prefetch):
    Q, O = 16, 20
    SB = (36, 52)
    P = 68
    KF = (76, 80)
    VF = ((84, 88), (92, 96))
    LK, LV = 0, 65536
    qf, kf, vf, of, kn = Q_F, K_F, VT_F, O_F, KN2
    a(f"""
    s_add_u32 s60, s36, {kn}
    s_addc_u32 s61, s37, 0
    s_add_u32 s60, s60, s39
    s_addc_u32 s61, s61, 0
    s_load_dwordx16 s[64:79], s[60:61], 0
    s_load_dwordx16 s[80:95], s[60:61], 64
    s_and_b32 s7, s3, 1
    s_lshl_b32 s8, s5, 1
    s_add_u32 s8, s8, s7
    s_lshr_b32 s9, s3, 1
    s_lshl_b32 s10, s6, 2
    s_add_u32 s9, s9, s10
    s_lshl_b32 s8, s8, 5
    s_add_u32 s8, s8, s9
    s_lshl_b32 s8, s8, 10
    s_add_u32 s9, s8, {qf}
    s_add_u32 s8, s8, {of}
    buffer_load_dwordx4 {vr(Q)}, v3, s[40:43], s9 offen
    s_lshl_b32 s10, s3, 10
    """)
    def dma_k(c):
        a(f"""
        s_add_u32 m0, s10, {LK + c * 8192}
        s_add_u32 s14, s10, {kf + c * 8192}
        buffer_load_dwordx4 v3, s[40:43], s14 offen lds
        """)
    def dma_v(cp, j):
        if j < 2:
            a(f"""
            s_add_u32 m0, s10, {LV + cp * 17408 + j * 8192}
            s_add_u32 s14, s10, {vf + cp * 17408 + j * 8192}
            buffer_load_dwordx4 v3, s[40:43], s14 offen lds
            """)
        else:
            a(f"""
            s_mov_b32 m0, {LV + cp * 17408 + 16384}
            s_mov_b32 s14, {vf + cp * 17408 + 16384}
            buffer_load_dwordx4 v3, s[40:43], s14 offen lds
            """)
    vm = []
    def issue_group(g):
        cp = g // 2
        dma_k(g); vm.append(("g", g))
        if g % 2 == 0:
            dma_v(cp, 0); vm.append(("g", g))
            dma_v(cp, 1); vm.append(("g", g))
        else:
            dma_v(cp, 2); vm.append(("g", g))
    issue_group(0)
    issue_group(1)
    a(f"""
    v_and_b32 v10, 31, v1
    v_lshrrev_b32 v12, 5, v1
    v_lshl_add_u32 v12, v12, 4, v10
    v_lshlrev_b32 v12, 4, v12
    v_mov_b32 v11, 528
    v_cmp_eq_u32 vcc, 16, v10
    v_cmp_eq_u32 s[12:13], 20, v10
    s_or_b64 s[12:13], vcc, s[12:13]
    v_mov_b32 v13, 512
    s_nop 1
    v_cndmask_b32 v11, v11, v13, s[12:13]
    v_cmp_gt_u32 vcc, 16, v10
    s_nop 1
    v_cndmask_b32 v12, v11, v12, vcc
    v_add_u32 v12, {LV}, v12
    s_waitcnt lgkmcnt(0)
    """)
    for i in range(1, 32):
        a(f"s_max_u32 s64, s64, s{64 + i}")
    a(f"""
    s_load_dwordx16 s[68:83], s[60:61], 128
    s_load_dwordx16 s[84:99], s[60:61], 192
    """)
    for r in range(16):
        a(f"v_mov_b32 v{O + r}, 0")
    a("s_waitcnt lgkmcnt(0)")
    for i in range(32):
        a(f"s_max_u32 s64, s64, s{68 + i}")
    a(f"""
    s_waitcnt vmcnt({len(vm)})
    v_mov_b32 v13, 0
    """)
    for r in range(4):
        a(f"v_dot2_f32_bf16 v13, v{Q + r}, v{Q + r}, v13")
    a(f"""
    s_nop 3
    v_mov_b32 v14, v13
    s_nop 1
    v_permlane32_swap_b32 v13, v14
    s_nop 1
    v_add_f32 v13, v13, v14
    v_mul_f32 v13, s64, v13
    v_cmp_ge_f32 vcc, 0x45610000, v13
    s_nop 4
    s_cmp_eq_u64 vcc, exec
    s_cselect_b32 s20, 0, 1
    """)
    if INSTR:
        a(f"{'s_memrealtime' if RT else 's_memtime'} s[96:97]\ns_waitcnt lgkmcnt(0)\ns_mov_b32 s98, s96")
    stamp(a, 0)
    NT = 64
    pf_list = list(prefetch)
    def rdK(i):
        a(f"ds_read_b128 {vr(KF[i % 2])}, v3 offset:{i * 1024}")
    def rdV(i):
        c, j = divmod(i, 16)
        if j == 0 and c > 0:
            a(f"v_add_u32 v12, 17408, v12")
        a(f"""
        ds_read_b128 {vr(VF[i % 2][0])}, v12 offset:{j * 1088}
        ds_read_b128 {vr(VF[i % 2][1])}, v12 offset:{j * 1088 + 544}
        """)
    def qk(i):
        a(f"v_mfma_f32_32x32x16_bf16 {vr(SB[i % 2], 16)}, {vr(KF[i % 2])}, {vr(Q)}, 0")
    def pv(i, t):
        a(f"v_mfma_f32_32x32x16_bf16 {vr(O, 16)}, {vr(VF[i % 2][t])}, {vr(P + 4 * t)}, {vr(O, 16)}")
    def group_wait(g):
        last = max(i for i, t in enumerate(vm) if t == ("g", g))
        a(f"s_waitcnt vmcnt({min(63, len(vm) - 1 - last)})\ns_barrier")
    NBAR = 0
    slow = a.lab("slow")
    done = a.lab("attdone")
    group_wait(0)
    stamp(a, 1)
    a(f"s_cmp_lg_u32 s20, 0\ns_cbranch_scc1 {slow}")
    vm_at_branch = list(vm)
    if "prioA" in EXP:
        lab = a.lab("pr")
        a(f"s_cmp_lt_u32 s3, 4\ns_cbranch_scc1 {lab}\ns_setprio 1\n{lab}:")
    rdK(0); rdK(1); rdV(0)
    a("s_waitcnt lgkmcnt(3)")
    qk(0)
    a.nop(12)
    def exps(s, lo, hi):
        for r in range(lo, hi):
            a(f"v_exp_f32 v{s + r}, v{s + r}")
    def cvts(s, lo, hi):
        for r in range(lo, hi):
            a(f"v_cvt_pk_bf16_f32 v{P + r}, v{s + 2 * r}, v{s + 2 * r + 1}")
    dma_ops = []
    for g in range(2, 8):
        cp = g // 2
        dma_ops.append((lambda: None, g))
    pending_groups = list(range(2, 8))
    BAR_GROUPS = [1, 3, 7]
    avail = 0
    for i in range(NT):
        s = SB[i % 2]
        if "prioB" in EXP:
            a(f"s_setprio {i % 2}")
        if "prioC" in EXP:
            a(f"s_setprio {(i // 2) % 2}")
        if "prioD" in EXP:
            a(f"s_setprio {3 - (i % 4)}")
        if "bar4" in EXP and i % 4 == 0 and i > 0:
            a("s_barrier"); NBAR += 1
        if "bar2" in EXP and i % 2 == 0 and i > 0:
            a("s_barrier"); NBAR += 1
        exps(s, 0, 4)
        if i > 0:
            pv(i - 1, 1)
        exps(s, 4, 8)
        need = (i + 2) // 8 if i + 2 < NT else 7
        if need > avail:
            g = min(x for x in BAR_GROUPS if x >= need)
            group_wait(g); NBAR += 1
            avail = g
        if i + 1 < NT:
            a("s_waitcnt lgkmcnt(2)" if i > 0 else "s_waitcnt lgkmcnt(2)")
        cvts(s, 0, 4)
        if i + 1 < NT:
            qk(i + 1)
            if i + 2 < NT:
                rdK(i + 2)
        exps(s, 8, 12)
        a(f"s_waitcnt lgkmcnt({1 if i + 2 < NT else 0})")
        pv(i, 0)
        exps(s, 12, 16)
        if pending_groups:
            issue_group(pending_groups.pop(0))
        elif pf_list:
            pf_list.pop(0)(a)
            vm.append(("p", 0))
        else:
            a("s_nop 0")
        cvts(s, 4, 8)
        if i + 1 < NT:
            rdV(i + 1)
    a.nop(2)
    pv(NT - 1, 1)
    a("s_setprio 0")
    assert not pf_list
    a(f"s_branch {done}")
    NEGM = SB[1]
    l_mx, l_sl = a.lab("mx"), a.lab("sl")
    a(f"{slow}:")
    for g in range(2, 8):
        issue_group(g)
    for f in prefetch:
        f(a)
    a("s_waitcnt vmcnt(0)")
    for _ in range(NBAR):
        a("s_barrier")
    a(f"""
    v_mov_b32 v8, v3
    v_mov_b32 v13, 0xff800000
    s_mov_b32 s21, 0
    {l_mx}:
    ds_read_b128 {vr(KF[0])}, v8
    s_waitcnt lgkmcnt(0)
    v_mfma_f32_32x32x16_bf16 {vr(SB[0], 16)}, {vr(KF[0])}, {vr(Q)}, 0
    """)
    a.nop(16)
    for r in range(0, 16, 2):
        a(f"v_max3_f32 v13, v{SB[0] + r}, v{SB[0] + r + 1}, v13")
    a(f"""
    v_add_u32 v8, 1024, v8
    s_add_u32 s21, s21, 1
    s_cmp_lt_u32 s21, 64
    s_cbranch_scc1 {l_mx}
    v_xor_b32 v14, 32, v1
    v_lshlrev_b32 v14, 2, v14
    ds_bpermute_b32 v15, v14, v13
    s_waitcnt lgkmcnt(0)
    v_max_f32 v13, v13, v15
    v_sub_f32 v13, 0, v13
    """)
    for r in range(16):
        a(f"v_mov_b32 v{NEGM + r}, v13")
    a(f"""
    v_mov_b32 v8, v3
    s_mov_b32 s21, 0
    {l_sl}:
    ds_read_b128 {vr(KF[0])}, v8
    ds_read_b128 {vr(VF[0][0])}, v12
    ds_read_b128 {vr(VF[0][1])}, v12 offset:544
    s_waitcnt lgkmcnt(0)
    v_mfma_f32_32x32x16_bf16 {vr(SB[0], 16)}, {vr(KF[0])}, {vr(Q)}, {vr(NEGM, 16)}
    """)
    a.nop(16)
    for r in range(16):
        a(f"v_exp_f32 v{SB[0] + r}, v{SB[0] + r}")
    a("s_nop 0")
    for r in range(8):
        a(f"v_cvt_pk_bf16_f32 v{P + r}, v{SB[0] + 2 * r}, v{SB[0] + 2 * r + 1}")
    a(f"""
    s_nop 1
    v_mfma_f32_32x32x16_bf16 {vr(O, 16)}, {vr(VF[0][0])}, {vr(P)}, {vr(O, 16)}
    v_mfma_f32_32x32x16_bf16 {vr(O, 16)}, {vr(VF[0][1])}, {vr(P + 4)}, {vr(O, 16)}
    v_add_u32 v8, 1024, v8
    v_add_u32 v12, 1088, v12
    s_add_u32 s21, s21, 1
    s_cmp_lt_u32 s21, 64
    s_cbranch_scc1 {l_sl}
    {done}:
    """)
    a.nop(16)
    a(f"v_rcp_f32 v13, v{O + 8}\ns_nop 0")
    for r in range(8):
        a(f"v_mul_f32 v{O + r}, v13, v{O + r}")
    for r in range(4):
        a(f"v_cvt_pk_bf16_f32 v{P + r}, v{O + 2 * r}, v{O + 2 * r + 1}")
    place_resolve(a)
    hstore(a, [f"buffer_store_dwordx4 {vr(P)}, v3, s[40:43], s8 offen"])


def phase_wo(a, post_pf):
    dstamp(a, "wo", 0)
    B = 80
    xin, xout, of = XIN_F, X1_F, O_F
    a(f"""
    s_lshl_b32 s8, s5, 16
    s_lshl_b32 s9, s3, 12
    s_add_u32 s8, s8, s9
    s_add_u32 s8, s8, {of}
    s_add_u32 s9, s8, 32768
    """)
    for k in range(4):
        a(f"buffer_load_dwordx4 {vr(B + k * 8)}, v3, s[40:43], s8 offen offset:{k * 1024} sc1")
        a(f"buffer_load_dwordx4 {vr(B + k * 8 + 4)}, v3, s[40:43], s9 offen offset:{k * 1024} sc1")
    owner_frag_off(a, 58, 0)
    lr1, lr2 = a.lab("rr"), a.lab("rs")
    srd(a, 64, P_X, 2048 * 1024)
    a(f"""
    s_add_u32 s59, s58, {xout}
    s_cmp_lg_u32 s38, 0
    s_cbranch_scc1 {lr1}
    v_and_b32 v0, 31, v1
    v_lshlrev_b32 v0, 10, v0
    v_lshrrev_b32 v2, 5, v1
    v_lshl_add_u32 v0, v2, 3, v0
    s_lshl_b32 s60, s56, 15
    s_lshl_b32 s61, s57, 5
    s_add_u32 s60, s60, s61
    buffer_load_dwordx2 v[12:13], v0, s[64:67], s60 offen
    buffer_load_dwordx2 v[14:15], v0, s[64:67], s60 offen offset:16
    s_branch {lr2}
    {lr1}:
    s_add_u32 s58, s58, {xin}
    buffer_load_dwordx2 v[12:13], v3, s[40:43], s58 offen
    buffer_load_dwordx2 v[14:15], v3, s[40:43], s58 offen offset:8
    {lr2}:
    """)
    NR = 2
    dstamp(a, "wo", 1)
    for k in range(4):
        a(f"s_waitcnt vmcnt({(3 - k) * 2 + NR})")
        dstamp(a, "wo", 2 + k)
        for n in range(2):
            for t in range(2):
                c = vr(ACC + (n * 2 + t) * 16, 16)
                a(f"v_mfma_f32_32x32x16_bf16 {c}, {vr(R_WOA + (n * 4 + k) * 4)}, {vr(B + k * 8 + t * 4)}, {'0' if k == 0 else c}")
    a.nop(14)
    dstamp(a, "wo", 6)
    spr = list(post_pf)
    reduce8_write(a, spr)
    dstamp(a, "wo", 7)
    a("s_waitcnt lgkmcnt(0)\ns_barrier")
    dstamp(a, "wo", 8)
    reduce8_read(a, spr)
    dstamp(a, "wo", 9)
    a(f"s_waitcnt vmcnt({len(post_pf)})")
    resid_epilogue(a, 12, 59, False, STX1)
    dstamp(a, "wo", 10)

def phase_ffn1(a, loop_pf):
    A1, BB = 16, 48
    CS = 208
    DB = 4
    xin, hf = X1_F, H_F
    a(f"""
    s_lshl_b32 s8, s5, 16
    s_lshl_b32 s9, s3, 12
    s_add_u32 s8, s8, s9
    s_add_u32 s8, s8, {xin}
    s_mov_b32 m0, s9
    s_add_u32 s10, s8, 32768
    """)
    for i in range(4):
        a(f"buffer_load_dwordx4 v3, s[40:43], s8 offen offset:{i * 1024} sc1 lds")
    a("s_add_u32 m0, s9, 32768\ns_nop 0")
    for i in range(4):
        a(f"buffer_load_dwordx4 v3, s[40:43], s10 offen offset:{i * 1024} sc1 lds")
    a(f"""
    v_lshrrev_b32 v4, 5, v1
    v_lshlrev_b32 v4, 4, v4
    s_lshl_b32 s11, s51, 7
    s_add_u32 s11, s11, {CS1}
    s_sub_u32 s11, s11, s39
    v_mov_b32 v8, 0
    v_mov_b32 v9, 0
    v_mov_b32 v10, 0
    v_mov_b32 v11, 0
    s_waitcnt vmcnt(0)
    s_barrier
    """)
    stamp(a, 7)
    l_w7, l_join = a.lab("w7"), a.lab("f1j")
    a(f"s_cmp_eq_u32 s3, 7\ns_cbranch_scc1 {l_w7}")
    def rdB(kt):
        b = BB + (kt % DB) * 8
        a(f"ds_read_b128 {vr(b)}, v3 offset:{kt * 1024}")
        a(f"ds_read_b128 {vr(b + 4)}, v3 offset:{32768 + kt * 1024}")
    pf = list(loop_pf)
    vm = []
    for kt in range(DB - 1):
        rdB(kt)
    for kt in range(32):
        if kt + DB - 1 < 32:
            rdB(kt + DB - 1)
        ahead = min(DB - 1, 31 - kt)
        w = f"lgkmcnt({2 * ahead})"
        a(f"s_waitcnt {w}")
        b = BB + (kt % DB) * 8
        for t in range(2):
            c = vr(A1 + t * 16, 16)
            a(f"v_mfma_f32_32x32x16_bf16 {c}, {vr(w1reg(kt))}, {vr(b + t * 4)}, {'0' if kt == 0 else c}")
        if pf and kt % 4 != 3 and pf[0][0] - 12 <= kt:
            fn = pf.pop(0)[1]
            if "nopf" not in EXP:
                fn(a)
                vm.append("p")
        if kt == 20:
            for j in range(4):
                a(f"buffer_load_dwordx4 {vr(CS + j * 4)}, v4, s[40:43], s11 offen offset:{j * 32}")
                vm.append("cs")
    assert not pf
    a.nop(8)
    a(f"s_branch {l_join}\n{l_w7}:")
    sti = STX1
    a(f"""
    v_and_b32 v5, 31, v1
    v_lshlrev_b32 v5, 3, v5
    v_lshrrev_b32 v6, 5, v1
    v_lshl_add_u32 v5, v6, 12, v5
    s_lshl_b32 s60, s5, 14
    s_add_u32 s60, s60, {sti}
    s_add_u32 s61, s60, 8192
    """)
    for t in range(2):
        for i in range(16):
            a(f"buffer_load_dwordx2 v[{16 + t * 32 + 2 * i}:{17 + t * 32 + 2 * i}], v5, s[40:43], s{60 + t} offen offset:{i * 256} sc1")
    a("s_waitcnt vmcnt(0)")
    for t in range(2):
        b = 16 + t * 32
        for i in range(1, 16):
            a(f"v_add_f32 v{b}, v{b}, v{b + 2 * i}\nv_add_f32 v{b + 1}, v{b + 1}, v{b + 2 * i + 1}")
    a(f"""
    v_mov_b32 v4, v16
    v_mov_b32 v6, v17
    v_mov_b32 v8, v48
    v_mov_b32 v10, v49
    v_mov_b32 v12, v16
    v_mov_b32 v13, v17
    v_mov_b32 v14, v48
    v_mov_b32 v15, v49
    s_nop 1
    v_permlane32_swap_b32 v4, v12
    v_permlane32_swap_b32 v6, v13
    v_permlane32_swap_b32 v8, v14
    v_permlane32_swap_b32 v10, v15
    s_nop 1
    v_add_f32 v4, v4, v12
    v_add_f32 v6, v6, v13
    v_add_f32 v8, v8, v14
    v_add_f32 v10, v10, v15
    """)
    stats_finish(a, 4, 6, 16, 17, 12, 13)
    stats_finish(a, 8, 10, 18, 19, 12, 13)
    a(f"""
    v_mul_f32 v16, v16, v17
    v_mul_f32 v18, v18, v19
    v_and_b32 v5, 31, v1
    v_lshlrev_b32 v5, 4, v5
    v_add_u32 v5, {LDS_STAT}, v5
    ds_write_b128 v5, v[16:19]
    """)
    for f, fn in loop_pf:
        fn(a)
    a(f"""
    s_waitcnt lgkmcnt(0)
    {l_join}:
    v_and_b32 v5, 31, v1
    v_lshlrev_b32 v5, 4, v5
    v_add_u32 v5, {LDS_STAT}, v5
    s_barrier
    """)
    stamp(a, 8)
    T = 48
    lab = a.lab("f1s")
    a(f"s_cmp_eq_u32 s3, 7\ns_cbranch_scc1 {lab}")
    last = max(i for i, t in enumerate(vm) if t == "cs")
    a(f"""
    ds_read_b128 v[8:11], v5
    s_waitcnt vmcnt({len(vm) - 1 - last}) lgkmcnt(0)
    """)
    for t in range(2):
        for r in range(16):
            c = A1 + t * 16 + r
            a(f"v_mul_f32 v{c}, v{9 + 2 * t}, v{c}")
            a(f"v_fma_f32 v{c}, -v{8 + 2 * t}, v{CS + r}, v{c}")
        for r in range(8):
            a(f"v_cvt_pk_bf16_f32 v{T + t * 8 + r}, v{A1 + t * 16 + 2 * r}, v{A1 + t * 16 + 2 * r + 1}")
        for r in range(8):
            a(f"v_pk_max_i16 v{T + t * 8 + r}, v{T + t * 8 + r}, 0")
    a(f"""
    s_mul_i32 s12, s5, 224
    s_lshl_b32 s13, s51, 1
    s_add_u32 s12, s12, s13
    s_lshl_b32 s12, s12, 10
    s_add_u32 s12, s12, {hf}
    s_add_u32 s13, s12, {112 * 1024}
    """)
    hstore(a, [f"buffer_store_dwordx4 {vr(T)}, v3, s[40:43], s12 offen",
               f"buffer_store_dwordx4 {vr(T + 4)}, v3, s[40:43], s12 offen offset:1024",
               f"buffer_store_dwordx4 {vr(T + 8)}, v3, s[40:43], s13 offen",
               f"buffer_store_dwordx4 {vr(T + 12)}, v3, s[40:43], s13 offen offset:1024"])
    a(f"{lab}:")

def phase_ffn2(a, loop_pf):
    dstamp(a, "f2", 0)
    RB = 208
    D = int(os.environ.get('F2D', '4'))
    xin, hf = X1_F, H_F
    a(f"""
    s_mul_i32 s9, s3, {14 * 1024}
    s_mul_i32 s10, s5, {224 * 1024}
    s_add_u32 s10, s10, s9
    s_add_u32 s10, s10, {hf}
    s_add_u32 s11, s10, {112 * 1024}
    """)
    def load(k):
        b = RB + (k % D) * 8
        o = (k % 4) * 1024
        a(f"buffer_load_dwordx4 {vr(b)}, v3, s[40:43], s10 offen offset:{o} sc1")
        a(f"buffer_load_dwordx4 {vr(b + 4)}, v3, s[40:43], s11 offen offset:{o} sc1")
        if k % 4 == 3:
            a("s_add_u32 s10, s10, 4096\ns_add_u32 s11, s11, 4096")
    owner_frag_off(a, 58, 0)
    a(f"""
    s_add_u32 s59, s58, {XIN_F + ARENA}
    s_add_u32 s58, s58, {xin}
    buffer_load_dwordx4 v[12:15], v3, s[40:43], s58 offen sc1
    """)
    for k in range(D):
        load(k)
    order = []
    for k in range(D):
        order += [("b", k), ("b", k)]
    pf = list(loop_pf)
    dstamp(a, "f2", 1)
    for k in range(14):
        last = max(i for i, t in enumerate(order) if t == ("b", k))
        a(f"s_waitcnt vmcnt({len(order) - 1 - last})")
        if k in (0, 3, 6, 9, 13): dstamp(a, "f2", 2 + (0, 3, 6, 9, 13).index(k))
        b = RB + (k % D) * 8
        for n in range(2):
            for t in range(2):
                c = vr(ACC + (n * 2 + t) * 16, 16)
                a(f"v_mfma_f32_32x32x16_bf16 {c}, {vr(w2reg(k * 2 + n))}, {vr(b + t * 4)}, {'0' if k == 0 else c}")
        if k + D < 14:
            load(k + D)
            order += [("b", k + D)] * 2
    a.nop(14)
    dstamp(a, "f2", 7)
    reduce8_write(a, pf)
    dstamp(a, "f2", 8)
    a("s_waitcnt lgkmcnt(0)\ns_barrier")
    dstamp(a, "f2", 9)
    reduce8_read(a, pf)
    dstamp(a, "f2", 10)
    resid_epilogue(a, 12, 59, None, STXIN + ARENA)
    dstamp(a, "f2", 11)

def phase_qkv(a, layer, raw, after_bar=None):
    dstamp(a, "qkv", 0)
    B = 208
    KV = 80
    CQ = (144, 160)
    CK = 176
    ONES = 192
    qf, kf, vf, kn = Q_F + layer * ARENA, K_F + layer * ARENA, VT_F + layer * ARENA, KN2 + layer * ARENA
    LDS_CS = LDS_STAT + 4096
    owner_frag_off(a, 58, qf)
    if not raw:
        a(f"""
        s_lshl_b32 s8, s5, 16
        s_lshl_b32 s9, s3, 12
        s_add_u32 s8, s8, s9
        s_add_u32 s8, s8, {XIN_F + ARENA}
        s_add_u32 s9, s8, 32768
        """)
        for k in range(4):
            a(f"buffer_load_dwordx4 {vr(B + k * 8)}, v3, s[40:43], s8 offen offset:{k * 1024} sc1")
            a(f"buffer_load_dwordx4 {vr(B + k * 8 + 4)}, v3, s[40:43], s9 offen offset:{k * 1024} sc1")
        a(f"""
        v_and_b32 v6, 31, v1
        v_lshlrev_b32 v6, 3, v6
        v_lshrrev_b32 v7, 5, v1
        v_lshl_add_u32 v6, v7, 9, v6
        s_lshl_b32 s60, s5, 14
        s_lshl_b32 s61, s3, 10
        s_add_u32 s60, s60, s61
        s_add_u32 s60, s60, {STXIN + ARENA}
        s_add_u32 s61, s60, 8192
        buffer_load_dwordx2 v[8:9], v6, s[40:43], s60 offen sc1
        buffer_load_dwordx2 v[200:201], v6, s[40:43], s60 offen offset:256 sc1
        buffer_load_dwordx2 v[10:11], v6, s[40:43], s61 offen sc1
        buffer_load_dwordx2 v[202:203], v6, s[40:43], s61 offen offset:256 sc1
        v_lshrrev_b32 v4, 5, v1
        v_lshlrev_b32 v4, 4, v4
        s_lshl_b32 s60, s57, 6
        s_add_u32 s60, s60, {CSQ}
        buffer_load_dwordx4 v[240:243], v4, s[40:43], s60 offen
        buffer_load_dwordx4 v[244:247], v4, s[40:43], s60 offen offset:32
        s_mov_b32 s60, {CSKV}
        buffer_load_dwordx4 v[248:251], v4, s[40:43], s60 offen
        buffer_load_dwordx4 v[252:255], v4, s[40:43], s60 offen offset:32
        v_and_b32 v5, 31, v1
        v_lshlrev_b32 v5, 2, v5
        buffer_load_dword v15, v5, s[40:43], s60 offen
        """)
        NX = 9
    else:
        for r in range(4):
            a(f"v_mov_b32 v{8 + r}, 0\nv_mov_b32 v{ONES + r}, s50")
    dstamp(a, "qkv", 1)
    for k in range(4):
        if not raw:
            a(f"s_waitcnt vmcnt({(3 - k) * 2 + NX})")
        else:
            a(f"s_waitcnt lgkmcnt({(3 - k) * 6})") if False else None
        if k in (0, 3): dstamp(a, "qkv", 2 + (k == 3))
        for n in range(2):
            for t in range(2):
                c = vr(ACC + (n * 2 + t) * 16, 16)
                a(f"v_mfma_f32_32x32x16_bf16 {c}, {vr(R_WQA + (n * 4 + k) * 4)}, {vr(B + k * 8 + t * 4)}, {'0' if k == 0 else c}")
            if raw:
                c = vr(CQ[n], 16)
                a(f"v_mfma_f32_32x32x16_bf16 {c}, {vr(ONES)}, {vr(R_WQA + (n * 4 + k) * 4)}, {'0' if k == 0 else c}")
        if raw:
            for t in range(2):
                for r in range(4):
                    b = B + k * 8 + t * 4 + r
                    a(f"v_dot2_f32_bf16 v{8 + 2 * t}, v{b}, s50, v{8 + 2 * t}")
                    a(f"v_dot2_f32_bf16 v{9 + 2 * t}, v{b}, v{b}, v{9 + 2 * t}")
    lend = a.lab("kve")
    a(f"s_cmp_ge_u32 s6, 4\ns_cbranch_scc1 {lend}")
    if raw:
        for k in range(4):
            c = vr(CK, 16)
            a(f"v_mfma_f32_32x32x16_bf16 {c}, {vr(ONES)}, {vr(R_WKV + k * 4)}, {'0' if k == 0 else c}")
    for m in range(4):
        t = m & 1
        lnext = a.lab("kvn")
        a(f"s_cmp_lg_u32 s6, {m}\ns_cbranch_scc1 {lnext}")
        for k in range(4):
            w, x = vr(R_WKV + k * 4), vr(B + k * 8 + t * 4)
            c = vr(KV, 16)
            if m < 2:
                a(f"v_mfma_f32_32x32x16_bf16 {c}, {w}, {x}, {'0' if k == 0 else c}")
            else:
                a(f"v_mfma_f32_32x32x16_bf16 {c}, {x}, {w}, {'0' if k == 0 else c}")
        a(f"s_branch {lend}\n{lnext}:")
    a(f"{lend}:")
    if not raw:
        a(f"""
        s_waitcnt vmcnt(5)
        v_add_f32 v8, v8, v200
        v_add_f32 v9, v9, v201
        v_add_f32 v10, v10, v202
        v_add_f32 v11, v11, v203
        """)
    else:
        a.nop(4)
    a(f"""
    v_mov_b32 v4, v8
    v_mov_b32 v5, v9
    v_mov_b32 v6, v10
    v_mov_b32 v7, v11
    s_lshl_b32 s60, s3, 9
    v_and_b32 v14, 31, v1
    v_permlane32_swap_b32 v8, v4
    v_permlane32_swap_b32 v9, v5
    v_permlane32_swap_b32 v10, v6
    v_permlane32_swap_b32 v11, v7
    v_lshlrev_b32 v14, 4, v14
    v_add_u32 v14, {LDS_STAT}, v14
    v_add_f32 v8, v8, v4
    v_add_f32 v9, v9, v5
    v_add_f32 v10, v10, v6
    v_add_f32 v11, v11, v7
    v_add_u32 v4, s60, v14
    """)
    a.nop(6)
    dstamp(a, "qkv", 4)
    if raw:
        after_bar(a)
        a("s_barrier")
    a("ds_write_b128 v4, v[8:11]")
    if raw:
        a(f"""
        s_mul_i32 s60, s3, 384
        v_and_b32 v5, 31, v1
        v_lshlrev_b32 v5, 2, v5
        v_add_u32 v5, s60, v5
        v_add_u32 v5, {LDS_CS}, v5
        ds_write_b32 v5, v{CQ[0]}
        ds_write_b32 v5, v{CQ[1]} offset:128
        ds_write_b32 v5, v{CK} offset:256
        """)
    reduce8_write(a)
    l1, l1b = a.lab("kvw"), a.lab("kvx")
    a(f"""
    s_cmp_ge_u32 s6, 4
    s_cbranch_scc1 {l1}
    s_mul_i32 s60, s3, {16384 + 2048}
    v_add_u32 v2, s60, v3
    ds_write_b128 v2, {vr(KV)} offset:{LDS_RED}
    ds_write_b128 v2, {vr(KV + 4)} offset:{LDS_RED + 1024}
    s_cmp_lt_u32 s6, 2
    s_cbranch_scc1 {l1}
    s_lshl_b32 s60, s3, 11
    v_add_u32 v2, s60, v3
    v_add_u32 v2, {LDS_KV2}, v2
    ds_write_b128 v2, {vr(KV + 8)}
    ds_write_b128 v2, {vr(KV + 12)} offset:1024
    {l1}:
    """)
    dstamp(a, "qkv", 5)
    a("""
    s_waitcnt lgkmcnt(0)
    s_barrier
    """)
    dstamp(a, "qkv", 6)
    T = 208
    for w in range(8):
        a(f"ds_read_b128 {vr(T + w * 4)}, v14 offset:{w * 512}")
    a("s_waitcnt lgkmcnt(0)")
    def mid_stats(a):
        for w in range(1, 8):
            for r in range(4):
                a(f"v_add_f32 v{T + r}, v{T + r}, v{T + w * 4 + r}")
        stats_finish(a, T, T + 1, 72 + 160, 73 + 160, 12, 13)
        stats_finish(a, T + 2, T + 3, 74 + 160, 75 + 160, 12, 13)
    M0, R0, M1, R1 = 232, 233, 234, 235
    reduce8_read(a, [mid_stats])
    dstamp(a, "qkv", 7)
    if raw:
        a(f"""
        s_lshr_b32 s60, s3, 2
        s_lshl_b32 s60, s60, 7
        s_and_b32 s61, s3, 1
        s_lshl_b32 s61, s61, 6
        s_add_u32 s60, s60, s61
        v_lshrrev_b32 v2, 5, v1
        v_lshlrev_b32 v2, 4, v2
        v_add_u32 v2, {LDS_CS}, v2
        v_add_u32 v0, s60, v2
        """)
        for w in range(8):
            a(f"ds_read_b128 {vr(16 + w * 8)}, v0 offset:{w * 384}\nds_read_b128 {vr(20 + w * 8)}, v0 offset:{w * 384 + 32}")
        a("s_waitcnt lgkmcnt(0)")
        for r in range(8):
            a(f"v_add_f32 v{240 + r}, v{16 + r}, v{24 + r}")
        for w in range(2, 8):
            for r in range(8):
                a(f"v_add_f32 v{240 + r}, v{240 + r}, v{16 + w * 8 + r}")
    dstamp(a, "qkv", 8)
    l2 = a.lab("qt")
    a(f"""
    v_mov_b32 v12, v{M0}
    v_mov_b32 v13, v{R0}
    s_bitcmp0_b32 s3, 1
    s_cbranch_scc1 {l2}
    v_mov_b32 v12, v{M1}
    v_mov_b32 v13, v{R1}
    {l2}:
    v_mul_f32 v13, 0x3eb8aa3b, v13
    """)
    if not raw:
        a("s_waitcnt vmcnt(0)")
    for r in range(8):
        a(f"v_fma_f32 v{4 + r}, -v12, v{240 + r}, v{4 + r}")
        a(f"v_mul_f32 v{4 + r}, v13, v{4 + r}")
    for r in range(4):
        a(f"v_cvt_pk_bf16_f32 v{64 + r}, v{4 + 2 * r}, v{5 + 2 * r}")
    a(f"buffer_store_dwordx4 v[64:67], v3, s[40:43], s58 offen")
    dstamp(a, "qkv", 9)
    fin = a.lab("kvfin")
    lv = a.lab("kvv")
    a(f"""
    s_cmp_ge_u32 s6, 4
    s_cbranch_scc1 {fin}
    s_cmp_ge_u32 s3, 2
    s_cbranch_scc1 {fin}
    s_and_b32 s7, s6, 1
    s_lshl_b32 s8, s5, 1
    s_add_u32 s8, s8, s7
    s_cmp_eq_u32 s3, 1
    s_cselect_b32 s9, 1, 0
    s_cmp_lt_u32 s6, 2
    s_cselect_b32 s10, 1, 0
    s_and_b32 s10, s10, s9
    s_cmp_lg_u32 s10, 0
    s_cbranch_scc1 {fin}
    """)
    la, lb = a.lab("ka"), a.lab("kb")
    a(f"""
    s_cmp_eq_u32 s3, 1
    s_cbranch_scc1 {la}
    v_add_u32 v2, {LDS_RED}, v3
    s_mov_b32 s11, {16384 + 2048}
    s_branch {lb}
    {la}:
    v_add_u32 v2, {LDS_KV2}, v3
    s_mov_b32 s11, 2048
    {lb}:
    """)
    for w in range(8):
        a(f"ds_read_b128 {vr(144 + w * 8)}, v2\nds_read_b128 {vr(148 + w * 8)}, v2 offset:1024\nv_add_u32 v2, s11, v2")
    if raw:
        a(f"""
        v_lshrrev_b32 v2, 5, v1
        v_lshlrev_b32 v2, 4, v2
        v_add_u32 v2, {LDS_CS + 256}, v2
        v_and_b32 v0, 15, v1
        v_lshlrev_b32 v0, 2, v0
        v_add_u32 v0, {LDS_CS + 256}, v0
        s_waitcnt lgkmcnt(0)
        """)
        for w in range(8):
            a(f"ds_read_b128 {vr(16 + w * 8)}, v2 offset:{w * 384}\nds_read_b128 {vr(20 + w * 8)}, v2 offset:{w * 384 + 32}")
        a("s_waitcnt lgkmcnt(0)")
        for w in range(8):
            a(f"ds_read_b32 v{80 + w}, v0 offset:{w * 384}")
        for r in range(8):
            a(f"v_add_f32 v{248 + r}, v{16 + r}, v{24 + r}")
        for w in range(2, 8):
            for r in range(8):
                a(f"v_add_f32 v{248 + r}, v{248 + r}, v{16 + w * 8 + r}")
        a("s_waitcnt lgkmcnt(0)\nv_add_f32 v15, v80, v81")
        for w in range(2, 8):
            a(f"v_add_f32 v15, v15, v{80 + w}")
    a("s_waitcnt lgkmcnt(0)")
    for w in range(1, 8):
        for r in range(8):
            a(f"v_add_f32 v{144 + r}, v{144 + r}, v{144 + w * 8 + r}")
    l3 = a.lab("kt")
    a(f"""
    s_cmp_eq_u32 s7, 0
    s_cbranch_scc1 {l3}
    v_mov_b32 v{M0}, v{M1}
    v_mov_b32 v{R0}, v{R1}
    {l3}:
    s_cmp_ge_u32 s6, 2
    s_cbranch_scc1 {lv}
    """)
    for r in range(8):
        a(f"v_fma_f32 v{144 + r}, -v{M0}, v{248 + r}, v{144 + r}")
        a(f"v_mul_f32 v{144 + r}, v{R0}, v{144 + r}")
    for r in range(4):
        a(f"v_cvt_pk_bf16_f32 v{160 + r}, v{144 + 2 * r}, v{145 + 2 * r}")
    a(f"""
    s_lshl_b32 s9, s8, 10
    s_add_u32 s9, s9, {kf}
    buffer_store_dwordx4 v[160:163], v3, s[40:43], s9 offen
    v_mov_b32 v8, 0
    """)
    for r in range(4):
        a(f"v_dot2_f32_bf16 v8, v{160 + r}, v{160 + r}, v8")
    a(f"""
    s_nop 3
    v_mov_b32 v9, v8
    s_nop 1
    v_permlane32_swap_b32 v8, v9
    s_nop 1
    v_add_f32 v8, v8, v9
    s_nop 1
    v_max_f32_dpp v8, v8, v8 row_ror:8 row_mask:0xf bank_mask:0xf
    s_nop 1
    v_max_f32_dpp v8, v8, v8 row_ror:4 row_mask:0xf bank_mask:0xf
    s_nop 1
    v_max_f32_dpp v8, v8, v8 row_ror:2 row_mask:0xf bank_mask:0xf
    s_nop 1
    v_max_f32_dpp v8, v8, v8 row_ror:1 row_mask:0xf bank_mask:0xf
    s_nop 1
    v_mov_b32 v9, v8
    s_nop 1
    v_permlane16_swap_b32 v8, v9
    s_nop 1
    v_max_f32 v8, v8, v9
    s_lshl_b32 s9, s8, 2
    s_add_u32 s9, s9, {kn}
    v_mov_b32 v9, 0
    s_mov_b64 exec, 1
    buffer_store_dword v8, v9, s[40:43], s9 offen
    s_mov_b64 exec, -1
    s_branch {fin}
    {lv}:
    """)
    a(f"""
    s_lshl_b32 s60, s3, 8
    v_and_b32 v4, 31, v1
    v_lshlrev_b32 v4, 2, v4
    v_add_u32 v4, s60, v4
    v_add_u32 v4, {LDS_PRIV}, v4
    ds_write_b32 v4, v{M0}
    ds_write_b32 v4, v{R0} offset:128
    v_lshrrev_b32 v5, 5, v1
    v_lshlrev_b32 v5, 4, v5
    s_lshl_b32 s61, s3, 6
    s_add_u32 s60, s60, s61
    v_add_u32 v5, s60, v5
    v_add_u32 v5, {LDS_PRIV}, v5
    ds_read_b128 v[160:163], v5
    ds_read_b128 v[164:167], v5 offset:32
    ds_read_b128 v[168:171], v5 offset:128
    ds_read_b128 v[172:175], v5 offset:160
    s_waitcnt lgkmcnt(0)
    """)
    for r in range(8):
        a(f"v_fma_f32 v{144 + r}, -v{160 + r}, v15, v{144 + r}")
        a(f"v_mul_f32 v{144 + r}, v{168 + r}, v{144 + r}")
    for r in range(4):
        a(f"v_cvt_pk_bf16_f32 v{176 + r}, v{144 + 2 * r}, v{145 + 2 * r}")
    a(f"""
    v_and_b32 v4, 15, v1
    v_lshrrev_b32 v5, 5, v1
    v_lshl_add_u32 v4, v5, 4, v4
    v_lshlrev_b32 v4, 4, v4
    s_lshl_b32 s9, s8, 1
    s_add_u32 s9, s9, s3
    s_mul_i32 s9, s9, {VSTEP}
    s_add_u32 s9, s9, {vf}
    s_mov_b32 s12, 0xffff0000
    s_mov_b32 s13, 0xffff0000
    s_mov_b64 exec, s[12:13]
    buffer_store_dwordx4 v[176:179], v4, s[40:43], s9 offen
    s_mov_b64 exec, 3
    v_cmp_eq_u32 vcc, 0, v1
    v_mov_b32 v180, 0
    v_mov_b32 v181, s50
    s_nop 1
    v_cndmask_b32 v180, v180, v181, vcc
    v_mov_b32 v181, v180
    v_mov_b32 v182, v180
    v_mov_b32 v183, v180
    buffer_store_dwordx4 v[180:183], v3, s[40:43], s9 offen offset:512
    s_mov_b64 exec, -1
    {fin}:
    """)

LDS_KV2 = LDS_STAT + 8192
LDS_PRIV = LDS_KV2 + 16384
LDS_TOTAL = LDS_PRIV + 1024

def gen_pre():
    a = Asm("pre")
    name = "pre_kernel"
    begin(a, name, 256)
    group_map(a)
    XIMG, WIMG = 0, 65536
    def pb(i):
        return (80, 128)[i // 4] + (i % 4) * 4
    PF = 208
    LDS_PCS = LDS_STAT + 4096 + 3072
    srd(a, 64, P_X, 2048 * 1024)
    srd(a, 72, P_WQ, 512 * 1024)
    a(f"""
    v_lshrrev_b32 v4, 3, v1
    v_and_b32 v5, 7, v1
    s_mov_b32 s55, 255
    s_mov_b32 s59, 0
    v_mov_b32 v207, 0
    s_mov_b32 s62, 0
    s_mov_b32 s63, 0
    """)
    srd(a, 68, P_WQ, 512 * 1024)
    l_np, l_o, l_1, l_2, l_x, l_ld = a.lab("np"), a.lab("ro"), a.lab("r1"), a.lab("r2"), a.lab("rx"), a.lab("rl")
    a(f"""
    s_cmp_lt_u32 s6, 4
    s_cbranch_scc1 {l_np}
    s_lshl_b32 s55, s5, 2
    s_add_u32 s55, s55, s6
    s_sub_u32 s55, s55, 4
    s_cmp_ge_u32 s55, 72
    s_cbranch_scc1 {l_np}
    s_lshl_b32 s14, s3, 6
    s_mov_b32 s49, 32
    s_cmp_ge_u32 s55, 44
    s_cbranch_scc1 {l_2}
    s_cmp_ge_u32 s55, 16
    s_cbranch_scc1 {l_1}
    s_cmp_ge_u32 s55, 8
    s_cbranch_scc1 {l_o}
    """)
    srd(a, 68, P_WQ, 512 * 1024)
    a(f"""
    s_mov_b32 s13, 1024
    s_lshl_b32 s15, s55, 6
    s_mov_b32 s48, {WQ_F}
    s_mov_b32 s59, {CSQ}
    s_branch {l_ld}
    {l_o}:
    """)
    srd(a, 68, P_WO, 512 * 1024)
    a(f"""
    s_mov_b32 s13, 1024
    s_sub_u32 s15, s55, 8
    s_lshl_b32 s15, s15, 6
    s_mov_b32 s48, {WO_F}
    s_branch {l_ld}
    {l_1}:
    """)
    srd(a, 68, P_W1, 512 * 3584)
    a(f"""
    s_mov_b32 s13, 3584
    s_sub_u32 s15, s55, 16
    s_lshl_b32 s15, s15, 6
    s_mov_b32 s48, {W1_F}
    s_mov_b32 s59, {CS1}
    s_branch {l_ld}
    {l_2}:
    """)
    srd(a, 68, P_W2, 1792 * 1024)
    a(f"""
    s_mov_b32 s13, 1024
    s_sub_u32 s60, s55, 44
    s_lshl_b32 s60, s60, 3
    s_add_u32 s60, s60, s3
    s_mov_b32 s61, 153391690
    s_mul_hi_u32 s15, s60, s61
    s_mul_i32 s61, s15, 28
    s_sub_u32 s14, s60, s61
    s_lshl_b32 s14, s14, 6
    s_lshl_b32 s15, s15, 6
    s_mov_b32 s48, {W2_F}
    s_mov_b32 s49, 112
    {l_ld}:
    v_mul_u32_u24 v6, s13, v4
    v_lshl_add_u32 v6, v5, 4, v6
    s_mul_i32 s60, s14, s13
    s_lshl_b32 s61, s15, 1
    s_add_u32 s60, s60, s61
    s_lshl_b32 s63, s13, 3
    s_mov_b32 s62, s60
    v_mov_b32 v207, v6
    """)
    a(f"{l_np}:")
    lt1, lt2 = a.lab("t1"), a.lab("t2")
    a(f"""
    v_xor_b32 v6, v5, v4
    v_lshlrev_b32 v6, 4, v6
    v_lshl_add_u32 v6, v4, 10, v6
    v_lshlrev_b32 v7, 4, v5
    v_lshl_add_u32 v7, v4, 10, v7
    s_lshl_b32 s8, s5, 16
    s_lshl_b32 s9, s3, 7
    s_add_u32 s8, s8, s9
    s_lshl_b32 s10, s3, 13
    s_lshl_b32 s11, s3, 16
    s_lshl_b32 s9, s6, 7
    s_add_u32 s11, s11, s9
    v_lshlrev_b32 v8, 7, v1
    s_cmp_ge_u32 s3, 3
    s_cbranch_scc1 {lt2}
    s_cmp_eq_u32 s3, 0
    s_cbranch_scc1 {lt1}
    s_lshr_b32 s12, s2, 3
    s_lshl_b32 s12, s12, 1
    s_add_u32 s12, s12, s3
    s_sub_u32 s12, s12, 1
    s_lshl_b32 s12, s12, 13
    buffer_load_dword v9, v8, s[72:75], s12 offen
    s_branch {lt2}
    {lt1}:
    s_lshl_b32 s12, s5, 16
    s_lshl_b32 s9, s6, 13
    s_add_u32 s12, s12, s9
    buffer_load_dword v9, v8, s[64:67], s12 offen
    {lt2}:
    s_waitcnt vmcnt(0)
    s_barrier
    """)
    for i in range(8):
        a(f"""
        s_add_u32 m0, s10, {XIMG + i * 1024}
        s_add_u32 s12, s8, {i * 8192}
        buffer_load_dwordx4 v6, s[64:67], s12 offen lds
        s_add_u32 m0, s10, {WIMG + i * 1024}
        s_add_u32 s12, s11, {i * 8192}
        buffer_load_dwordx4 v7, s[72:75], s12 offen lds
        """)
    dstamp(a, "pre", 0)
    a(f"""
    v_lshrrev_b32 v5, 5, v1
    v_lshrrev_b32 v8, 4, v1
    v_and_b32 v9, 1, v8
    v_and_b32 v10, 15, v1
    v_lshrrev_b32 v11, 2, v10
    v_and_b32 v10, 3, v10
    s_lshl_b32 s12, s3, 11
    s_add_u32 s12, s12, {LDS_KV2}
    v_mov_b32 v14, 0
    v_mov_b32 v15, 0
    """)
    l_m4, l_go, l_v, l_kv, l_z2 = (a.lab(x) for x in ("m4", "go", "wv", "kvd", "z2"))
    a(f"""
    s_cmp_ge_u32 s6, 4
    s_cbranch_scc1 {l_m4}
    s_cmp_ge_u32 s6, 2
    s_cbranch_scc1 {l_v}
    """)
    srd(a, 68, P_WK, 512 * 32)
    a(f"s_branch {l_kv}\n{l_v}:")
    srd(a, 68, P_WV, 512 * 32)
    a(f"""
    {l_kv}:
    s_lshl_b32 s9, s3, 11
    s_mov_b32 m0, s12
    s_nop 0
    buffer_load_dwordx4 v3, s[68:71], s9 offen lds
    buffer_load_dwordx4 v3, s[68:71], s9 offen offset:1024 lds
    {l_z2}:
    s_waitcnt vmcnt(0)
    s_branch {l_go}
    {l_m4}:
    s_cmp_ge_u32 s55, 72
    s_cbranch_scc1 {l_z2}
    """)
    for i in range(8):
        a(f"buffer_load_dwordx4 {vr(pb(i))}, v207, s[68:71], s62 offen\ns_add_u32 s62, s62, s63")
    a(f"""
    s_waitcnt vmcnt(8)
    {l_go}:
    s_mov_b32 s63, s12
    """)
    def prep_share(a):
        l_e, l_z, l_kvp, l_cs = (a.lab(x) for x in ("pe", "pz", "pkv", "pcs"))
        a(f"""
        s_cmp_ge_u32 s55, 74
        s_cbranch_scc1 {l_e}
        v_lshrrev_b32 v196, 5, v1
        v_lshrrev_b32 v197, 4, v1
        v_and_b32 v197, 1, v197
        v_and_b32 v198, 15, v1
        v_lshrrev_b32 v199, 2, v198
        v_and_b32 v198, 3, v198
        v_lshl_add_u32 v200, v196, 2, v199
        v_add_u32 v202, s63, v3
        v_mov_b32 v204, 0
        v_mov_b32 v205, 0
        s_cmp_eq_u32 s55, 73
        s_cbranch_scc1 {l_z}
        s_cmp_eq_u32 s55, 72
        s_cbranch_scc1 {l_kvp}
        v_lshlrev_b32 v201, 7, v200
        v_lshl_add_u32 v201, v197, 5, v201
        v_lshl_add_u32 v201, v198, 3, v201
        v_add_u32 v201, s63, v201
        s_lshr_b32 s60, s15, 5
        s_mul_i32 s60, s60, s49
        s_lshr_b32 s61, s14, 4
        s_add_u32 s60, s60, s61
        s_lshl_b32 s60, s60, 10
        s_add_u32 s60, s60, s48
        s_lshl_b32 s61, s49, 10
        s_add_u32 s61, s61, s60
        s_waitcnt vmcnt(0)
        """)
        for k in range(4):
            a(f"ds_write_b128 v202, {vr(pb(2 * k))}\nds_write_b128 v202, {vr(pb(2 * k + 1))} offset:1024")
            for n in range(2):
                d = PF + (n * 4 + k) * 4
                a(f"ds_read_b64_tr_b16 v[{d}:{d + 1}], v201 offset:{n * 64}")
                a(f"ds_read_b64_tr_b16 v[{d + 2}:{d + 3}], v201 offset:{n * 64 + 1024}")
            a("s_waitcnt lgkmcnt(0)")
            for n in range(2):
                a(f"buffer_store_dwordx4 {vr(PF + (n * 4 + k) * 4)}, v3, s[40:43], s{60 + n} offen offset:{k * 1024}")
        a(f"""
        s_cmp_eq_u32 s59, 0
        s_cbranch_scc1 {l_e}
        """)
        for n in range(2):
            for i in range(16):
                a(f"v_dot2_f32_bf16 v{204 + n}, v{PF + n * 16 + i}, s50, v{204 + n}")
        a(f"""
        {l_cs}:
        s_nop 3
        v_mov_b32 v200, v204
        v_mov_b32 v201, v205
        v_and_b32 v196, 31, v1
        v_lshlrev_b32 v196, 2, v196
        v_permlane32_swap_b32 v204, v200
        v_permlane32_swap_b32 v205, v201
        v_add_u32 v196, s63, v196
        s_nop 0
        v_add_f32 v204, v204, v200
        v_add_f32 v205, v205, v201
        ds_write_b32 v196, v204
        ds_write_b32 v196, v205 offset:128
        s_branch {l_e}
        {l_kvp}:
        """)
        srd(a, 68, P_WK, 512 * 32)
        srd(a, 76, P_WV, 512 * 32)
        a(f"""
        v_lshlrev_b32 v201, 5, v200
        v_lshl_add_u32 v201, v197, 10, v201
        v_lshl_add_u32 v201, v198, 3, v201
        v_add_u32 v201, s63, v201
        s_lshl_b32 s60, s3, 12
        s_add_u32 s60, s60, {WKV_F}
        s_mov_b32 s59, {CSKV}
        s_mov_b32 s15, 0
        s_lshl_b32 s9, s3, 11
        buffer_load_dwordx4 {vr(pb(0))}, v3, s[68:71], s9 offen
        buffer_load_dwordx4 {vr(pb(1))}, v3, s[76:79], s9 offen
        buffer_load_dwordx4 {vr(pb(2))}, v3, s[68:71], s9 offen offset:1024
        buffer_load_dwordx4 {vr(pb(3))}, v3, s[76:79], s9 offen offset:1024
        s_waitcnt vmcnt(0)
        """)
        for h in range(2):
            a(f"ds_write_b128 v202, {vr(pb(2 * h))}\nds_write_b128 v202, {vr(pb(2 * h + 1))} offset:1024")
            for k in range(2):
                d = PF + (h * 2 + k) * 4
                a(f"ds_read_b64_tr_b16 v[{d}:{d + 1}], v201 offset:{k * 512}")
                a(f"ds_read_b64_tr_b16 v[{d + 2}:{d + 3}], v201 offset:{k * 512 + 256}")
            a("s_waitcnt lgkmcnt(0)")
        for k in range(4):
            a(f"buffer_store_dwordx4 {vr(PF + k * 4)}, v3, s[40:43], s60 offen offset:{k * 1024}")
        for i in range(16):
            a(f"v_dot2_f32_bf16 v204, v{PF + i}, s50, v204")
        a(f"""
        s_branch {l_cs}
        {l_z}:
        v_mov_b32 v206, 0
        v_mov_b32 v207, 0
        s_and_b32 s60, s3, 3
        s_mul_i32 s60, s60, 6144
        s_lshr_b32 s61, s3, 2
        s_mul_i32 s61, s61, {ARENA}
        s_add_u32 s60, s60, s61
        s_add_u32 s60, s60, {FLAGS}
        s_add_u32 s61, s60, 4096
        """)
        for i in range(4):
            a(f"buffer_store_dwordx4 v[204:207], v3, s[40:43], s60 offen offset:{i * 1024}")
        for i in range(2):
            a(f"buffer_store_dwordx4 v[204:207], v3, s[40:43], s61 offen offset:{i * 1024}")
        a(f"""
        {l_e}:
        s_waitcnt lgkmcnt(0)
        """)
    dstamp(a, "pre", 1)
    a(f"""
    v_and_b32 v4, 31, v1
    v_and_b32 v6, 7, v1
    v_lshlrev_b32 v7, 7, v4
    v_add_u32 v7, s10, v7
    """)
    for k in range(4):
        a(f"""
        v_add_u32 v8, {2 * k}, v5
        v_xor_b32 v8, v8, v6
        v_lshl_add_u32 v8, v8, 4, v7
        ds_read_b128 {vr(208 + k * 8)}, v8 offset:{XIMG}
        ds_read_b128 {vr(208 + k * 8 + 4)}, v8 offset:{XIMG + 4096}
        """)
    a(f"""
    v_lshl_add_u32 v12, v5, 3, v11
    v_lshlrev_b32 v13, 7, v12
    v_lshl_add_u32 v13, v9, 5, v13
    v_lshl_add_u32 v13, v10, 3, v13
    v_add_u32 v13, s10, v13
    v_add_u32 v13, {WIMG}, v13
    v_lshlrev_b32 v14, 5, v12
    v_lshl_add_u32 v14, v10, 3, v14
    v_add_u32 v14, s12, v14
    s_waitcnt lgkmcnt(0)
    """)
    for n in range(2):
        for k in range(4):
            d = R_WQA + (n * 4 + k) * 4
            a(f"ds_read_b64_tr_b16 v[{d}:{d + 1}], v13 offset:{k * 2048 + n * 64}")
            a(f"ds_read_b64_tr_b16 v[{d + 2}:{d + 3}], v13 offset:{k * 2048 + n * 64 + 512}")
        a("s_waitcnt lgkmcnt(0)")
    l_nokv = a.lab("nokv")
    a(f"s_cmp_ge_u32 s6, 4\ns_cbranch_scc1 {l_nokv}")
    for k in range(4):
        d = R_WKV + k * 4
        a(f"ds_read_b64_tr_b16 v[{d}:{d + 1}], v14 offset:{k * 512}")
        a(f"ds_read_b64_tr_b16 v[{d + 2}:{d + 3}], v14 offset:{k * 512 + 128}")
    a(f"s_waitcnt lgkmcnt(0)\n{l_nokv}:")
    dstamp(a, "pre", 2)
    phase_qkv(a, 0, True, prep_share)
    dstamp(a, "pre", 3)
    l_end = a.lab("pend")
    a(f"""
    s_cmp_eq_u32 s59, 0
    s_cbranch_scc1 {l_end}
    s_cmp_lg_u32 s3, 7
    s_cbranch_scc1 {l_end}
    v_lshlrev_b32 v2, 2, v1
    v_add_u32 v4, {LDS_KV2}, v2
    """)
    for i in range(8):
        a(f"ds_read_b32 v{16 + i}, v4 offset:{i * 2048}")
    a("s_waitcnt lgkmcnt(0)")
    for i in range(1, 8):
        a(f"v_add_f32 v16, v16, v{16 + i}")
    a(f"""
    s_lshl_b32 s60, s15, 2
    s_add_u32 s60, s60, s59
    buffer_store_dword v16, v2, s[40:43], s60 offen
    {l_end}:
    """)
    dstamp(a, "pre", 4)
    if INSTR: a("s_waitcnt vmcnt(0)")
    dstamp(a, "pre", 5)
    stamp_flush(a, 15)
    end(a, name)
    KERNELS.append((name, a.text(), 256, 100))
    return f"; @launch kernel={name} grid=(256,1,1) block=(512,1,1) lds={LDS_TOTAL}"

def gen_layers():
    a = Asm("ly")
    a(f"""
    .p2align 8
    layer1_kernel:
    s_mov_b32 s38, 1
    s_mov_b32 s39, {ARENA}
    s_branch layer_body
    """)
    a(""".globl layer0_kernel
    .type layer0_kernel,@function
    .p2align 8
    layer0_kernel:
    s_mov_b32 s38, 0
    s_mov_b32 s39, 0
    layer_body:
    """)
    name = "layer_body"
    a(f"""
    s_cmp_ge_u32 s2, 256
    s_cbranch_scc1 {name}_exit
    s_load_dwordx16 s[16:31], s[0:1], 0
    s_load_dwordx4 s[32:35], s[0:1], 64
    s_load_dwordx2 s[36:37], s[0:1], 80
    v_lshrrev_b32 v2, 6, v0
    v_and_b32 v1, 63, v0
    v_readfirstlane_b32 s3, v2
    v_lshlrev_b32 v3, 4, v1
    s_waitcnt lgkmcnt(0)
    s_add_u32 s40, s36, s39
    s_addc_u32 s41, s37, 0
    s_and_b32 s41, s41, 0xffff
    s_sub_u32 s42, {WS_END}, s39
    s_mov_b32 s43, 0x00020000
    """)
    group_map(a)
    a("""
    s_sub_u32 s44, s44, s39
    s_sub_u32 s45, s45, s39
    s_sub_u32 s46, s46, s39
    s_sub_u32 s47, s47, s39
    """)
    place_register(a)
    pf_att = [(lambda a, i=i: pf_wo(a, i)) for i in range(8)] + [(lambda a, k=k: pf_w1(a, k)) for k in range(28)]
    a("v_lshlrev_b32 v100, 7, v1")
    pf_att += [(lambda a: warm(a, 45, 28 * KB, 32))]
    for n in range(2):
        pf_att += [(lambda a, n=n: warm(a, 46, n * 112 * KB, 64)), (lambda a, n=n: warm(a, 46, n * 112 * KB + 8192, 48))]
    pf_att += [(lambda a: warm(a, 47, 0, 32)), (lambda a: warm(a, 47, 32768, 32))]
    a("v_mov_b32 v103, 0")
    pf_att += [(lambda a: a("buffer_load_dword v102, v103, s[40:43], s54 offen sc1"))]
    phase_att(a, pf_att)
    stamp(a, 2)
    signal(a, 0)
    stamp(a, 3)
    wait_flag(a, 0)
    stamp(a, 4)
    NW2_WO = 6
    phase_wo(a, [(lambda a, k=k: pf_w1(a, k)) for k in range(28, 32)] + [(lambda a, f=f: pf_w2(a, f)) for f in range(NW2_WO)])
    stamp(a, 5)
    signal(a, 1)
    dstamp(a, "wo", 11)
    wait_flag(a, 1)
    dstamp(a, "wo", 12)
    stamp(a, 6)
    phase_ffn1(a, [(f, (lambda a, f=f: pf_w2(a, f))) for f in range(NW2_WO, 28)])
    stamp(a, 9)
    signal(a, 2)
    wait_flag(a, 2)
    stamp(a, 10)
    def guarded(fn):
        def g(a):
            lab = a.lab("gq")
            a(f"s_cmp_lg_u32 s38, 0\ns_cbranch_scc1 {lab}")
            fn(a)
            a(f"{lab}:")
        return g
    pfq = [guarded(lambda a, i=i: pf_wq(a, i)) for i in range(8)] + [guarded(lambda a, k=k: pf_wkv(a, k)) for k in range(4)]
    phase_ffn2(a, pfq)
    stamp(a, 11)
    lskip = a.lab("noq")
    a(f"s_cmp_lg_u32 s38, 0\ns_cbranch_scc1 {lskip}")
    signal(a, 3)
    wait_flag(a, 3)
    stamp(a, 12)
    phase_qkv(a, 1, False)
    dstamp(a, "qkv", 10)
    stamp(a, 13)
    a(f"{lskip}:")
    if INSTR:
        a("s_waitcnt vmcnt(0)")
    stamp(a, 14)
    stamp_flush(a, 15)
    end(a, name)
    KERNELS.append(("layer1_kernel", a.text(), 256, 100))
    KERNELS.append(("layer0_kernel", None, 256, 100))
    return [f"; @launch kernel=layer{l}_kernel grid=(256,1,1) block=(512,1,1) lds={LDS_TOTAL}" for l in range(2)]

def main():
    launches = [gen_pre()] + gen_layers()
    hdr = open("interleave_layers__grouped_kv_mqa__dense_activation_relu__prompt.s.ref").read().split("; Override launch")[0]
    s = hdr + "\n".join(launches) + "\n"
    s += '.amdgcn_target "amdgcn-amd-amdhsa--gfx950"\n.text\n'
    for n, t, nv, ns in KERNELS:
        if t is not None:
            s += f".globl {n}\n.type {n},@function\n" + t
    s += '.section .rodata,"a"\n'
    for n, t, nv, ns in KERNELS:
        s += f""".p2align 6
.amdhsa_kernel {n}
  .amdhsa_next_free_vgpr {nv}
  .amdhsa_next_free_sgpr {100 if INSTR else ns}
  .amdhsa_accum_offset {(nv + 3) // 4 * 4}
  .amdhsa_group_segment_fixed_size 0
  .amdhsa_kernarg_size 88
  .amdhsa_user_sgpr_count 2
  .amdhsa_user_sgpr_kernarg_segment_ptr 1
  .amdhsa_system_sgpr_workgroup_id_x 1
.end_amdhsa_kernel
"""
    open(OUT, "w").write(s)

if __name__ == "__main__":
    main()
```

```python
import sys, os

OUT = os.environ.get("OUTS", "interleave_layers__grouped_kv_mqa__dense_activation_relu__prompt.s")
INSTR = os.environ.get("INSTR", "0") == "1"
INSTR_WG = int(os.environ.get("INSTR_WG", "0"))
INSTR_WAVE = int(os.environ.get("INSTR_WAVE", "0"))

KB = 1024
VSTEP = 544
VT_SZ = 128 * VSTEP
FLAGS = 0
KN2 = FLAGS + 24 * KB
K_F = KN2 + 4 * KB
VT_F = K_F + 64 * KB
XIN_F = VT_F + 68 * KB
X1_F = XIN_F + 2048 * KB
Q_F = X1_F + 2048 * KB
O_F = Q_F + 2048 * KB
H_F = O_F + 2048 * KB
STX1 = H_F + 7168 * KB
STXIN = STX1 + 512 * KB
ARENA = STXIN + 512 * KB
WQ_F = 2 * ARENA
WKV_F = WQ_F + 512 * KB
WO_F = WKV_F + 32 * KB
W1_F = WO_F + 512 * KB
W2_F = W1_F + 1792 * KB
CSQ = W2_F + 1792 * KB
CSKV = CSQ + 2 * KB
CS1 = CSKV + 1 * KB
WS_END = CS1 + 8 * KB

class Asm:
    def __init__(self, uid):
        self.lines = []
        self.uid = uid
        self.n = 0
    def __call__(self, s):
        for l in s.strip("\n").split("\n"):
            l = l.strip()
            if not l: continue
            self.lines.append(l if l.endswith(":") else "    " + l)
    def nop(self, n):
        while n > 0:
            k = min(n, 16)
            self(f"s_nop {k-1}")
            n -= k
    def lab(self, s):
        self.n += 1
        return f"L{self.uid}_{s}_{self.n}"
    def text(self):
        return "\n".join(self.lines) + "\n"

def vr(a, n=4):
    return f"v[{a}:{a+n-1}]"

KERNELS = []
P_X, P_WQ, P_WK, P_WV, P_WO, P_BX, P_W1, P_W2, P_OUT, P_DBG, P_WS = 16, 18, 20, 22, 24, 26, 28, 30, 32, 34, 36

NSTAMP = 16
DETAIL = os.environ.get("DETAIL", "")
EXP = os.environ.get("EXP", "").split(",") + ["sc1h", "prew", "sc1o"]
def wt(tag):
    return " sc1" if tag in EXP else ""
def dstamp(a, ph, i):
    if INSTR and DETAIL == ph:
        a(f"s_memtime s[96:97]\ns_waitcnt lgkmcnt(0)\ns_mov_b32 s{80+i}, s96")
RT = os.environ.get("RT", "0") == "1"
def stamp(a, i):
    if not INSTR or DETAIL: return
    a(f"{'s_memrealtime' if RT else 's_memtime'} s[96:97]\ns_waitcnt lgkmcnt(0)\ns_mov_b32 s{80+i}, s96")

def stamp_flush(a, n):
    if not INSTR: return
    lab = a.lab("sf")
    a(f"""
    s_cmp_lg_u32 s2, {INSTR_WG}
    s_cbranch_scc1 {lab}
    s_cmp_lg_u32 s3, {INSTR_WAVE}
    s_cbranch_scc1 {lab}
    s_mov_b32 s64, s34
    s_and_b32 s65, s35, 0xffff
    s_mov_b32 s66, 256
    s_mov_b32 s67, 0x00020000
    s_mov_b64 exec, 1
    v_mov_b32 v2, 0
    """)
    for i in range(n):
        a(f"s_sub_u32 s96, s{80+i}, s98\nv_mov_b32 v0, s96\nbuffer_store_dword v0, v2, s[64:67], 0 offen offset:{4*i}\ns_nop 1")
    a(f"s_waitcnt vmcnt(0)\n{lab}:")

def begin(a, name, nwg):
    a(f".p2align 8\n{name}:")
    a(f"""
    s_cmp_ge_u32 s2, {nwg}
    s_cbranch_scc1 {name}_exit
    s_load_dwordx16 s[16:31], s[0:1], 0
    s_load_dwordx4 s[32:35], s[0:1], 64
    s_load_dwordx2 s[36:37], s[0:1], 80
    v_lshrrev_b32 v2, 6, v0
    v_and_b32 v1, 63, v0
    v_readfirstlane_b32 s3, v2
    v_lshlrev_b32 v3, 4, v1
    s_waitcnt lgkmcnt(0)
    s_mov_b32 s40, s36
    s_and_b32 s41, s37, 0xffff
    s_mov_b32 s42, {WS_END}
    s_mov_b32 s43, 0x00020000
    """)
    if INSTR:
        a("s_memtime s[96:97]\ns_waitcnt lgkmcnt(0)\ns_mov_b32 s98, s96")

def end(a, name):
    a(f"{name}_exit:\ns_endpgm")

def srd(a, d, sp, nbytes):
    a(f"""
    s_mov_b32 s{d}, s{sp}
    s_and_b32 s{d+1}, s{sp+1}, 0xffff
    s_mov_b32 s{d+2}, {nbytes}
    s_mov_b32 s{d+3}, 0x00020000
    """)

def bf16r(a, d, s):
    a(f"v_cvt_pk_bf16_f32 v{d}, v{s}, v{s}\nv_lshlrev_b32 v{d}, 16, v{d}")

def stats_finish(a, s1, s2, vm, vr_, t0, t1):
    a(f"""
    v_mul_f32 v{t0}, 0x3b000000, v{s1}
    v_mul_f32 v{t1}, 0x3b000000, v{s2}
    v_fma_f32 v{t1}, -v{t0}, v{t0}, v{t1}
    v_max_f32 v{t1}, 0, v{t1}
    """)
    bf16r(a, vm, t0)
    bf16r(a, t1, t1)
    a(f"v_add_f32 v{t1}, 0x3727c5ac, v{t1}")
    bf16r(a, t1, t1)
    a(f"v_sqrt_f32 v{t1}, v{t1}\ns_nop 0")
    bf16r(a, t1, t1)
    a(f"v_rcp_f32 v{vr_}, v{t1}\ns_nop 0")

ACC = 16
R_WOA = 112
R_W1A = 144
R_W1B = 80
R_W2A0 = 96
R_W2A1 = 144
R_WQA = 96
R_WKV = 128
LDS_RED = 0
LDS_STAT = 135168
LDS_TOTAL = 135168 + 8192 + 4096

def w1reg(kt):
    return R_W1A + kt * 4 if kt < 28 else R_W1B + (kt - 28) * 4
def w2reg(f):
    return R_W2A0 + f * 4 if f < 12 else R_W2A1 + (f - 12) * 4

def group_map(a):
    a(f"""
    s_and_b32 s60, s2, 7
    s_lshr_b32 s61, s2, 3
    s_lshl_b32 s5, s60, 2
    s_lshr_b32 s62, s61, 3
    s_add_u32 s5, s5, s62
    s_and_b32 s6, s61, 7
    s_mov_b32 s50, 0x3f803f80
    """)
    a(f"""
    s_lshl_b32 s60, s6, 16
    s_lshl_b32 s61, s3, 12
    s_add_u32 s60, s60, s61
    s_add_u32 s44, s60, {WO_F}
    s_add_u32 s47, s60, {WQ_F}
    s_min_u32 s51, s3, 6
    s_mul_i32 s60, s6, 7
    s_add_u32 s51, s51, s60
    s_lshl_b32 s45, s51, 15
    s_add_u32 s45, s45, {W1_F}
    s_mul_i32 s60, s6, {224 * KB}
    s_mul_i32 s61, s3, {14 * KB}
    s_add_u32 s46, s60, s61
    s_add_u32 s46, s46, {W2_F}
    """)

def pf_wo(a, i):
    n, k = i >> 2, i & 3
    if n == 1:
        a(f"s_add_u32 s60, s44, 32768\nbuffer_load_dwordx4 {vr(R_WOA + i * 4)}, v3, s[40:43], s60 offen offset:{k * 1024}")
    else:
        a(f"buffer_load_dwordx4 {vr(R_WOA + i * 4)}, v3, s[40:43], s44 offen offset:{k * 1024}")
def pf_w1(a, kt):
    a(f"s_add_u32 s60, s45, {(kt // 4) * 4096}\nbuffer_load_dwordx4 {vr(w1reg(kt))}, v3, s[40:43], s60 offen offset:{(kt % 4) * 1024}")
def pf_w2(a, f):
    k, n = f >> 1, f & 1
    a(f"s_add_u32 s60, s46, {n * 112 * KB + (k // 4) * 4096}\nbuffer_load_dwordx4 {vr(w2reg(f))}, v3, s[40:43], s60 offen offset:{(k % 4) * 1024}")
def pf_wq(a, i):
    n, k = i >> 2, i & 3
    a(f"s_add_u32 s60, s47, {n * 32768}\nbuffer_load_dwordx4 {vr(R_WQA + i * 4)}, v3, s[40:43], s60 offen offset:{k * 1024}")
def pf_wkv(a, k):
    a(f"s_lshl_b32 s60, s3, 12\ns_add_u32 s60, s60, {WKV_F}\nbuffer_load_dwordx4 {vr(R_WKV + k * 4)}, v3, s[40:43], s60 offen offset:{k * 1024}")

def warm(a, sbase, off, nlines):
    a(f"s_add_u32 s60, s{sbase}, {off}\nbuffer_load_dword v101, v100, s[40:43], s60 offen")

def place_register(a):
    lab = a.lab("pr")
    a(f"""
    s_getreg_b32 s53, hwreg(HW_REG_XCC_ID)
    s_and_b32 s53, s53, 7
    s_lshl_b32 s53, s53, 2
    s_lshl_b32 s54, s5, 7
    s_add_u32 s54, s54, {FLAGS + 4 * 4096}
    s_cmp_lg_u32 s3, 7
    s_cbranch_scc1 {lab}
    s_lshl_b32 s60, 1, s53
    v_mov_b32 v4, s60
    v_mov_b32 v5, 0
    s_mov_b64 exec, 1
    buffer_atomic_add v4, v5, s[40:43], s54 offen
    s_mov_b64 exec, -1
    {lab}:
    """)

def place_resolve(a):
    lp, ld, lc = a.lab("pp"), a.lab("pd"), a.lab("pc")
    a(f"""
    s_mov_b32 s61, 0
    s_branch {lc}
    {lp}:
    buffer_load_dword v102, v103, s[40:43], s54 offen sc1
    {lc}:
    s_waitcnt vmcnt(0)
    v_readfirstlane_b32 s62, v102
    s_and_b32 s63, s62, 0x0f0f0f0f
    s_lshr_b32 s60, s62, 4
    s_and_b32 s60, s60, 0x0f0f0f0f
    s_add_u32 s63, s63, s60
    s_mul_i32 s63, s63, 0x01010101
    s_lshr_b32 s63, s63, 24
    s_cmp_ge_u32 s63, 8
    s_cbranch_scc1 {ld}
    s_add_u32 s61, s61, 1
    s_cmp_ge_u32 s61, 0x400000
    s_cbranch_scc1 {ld}
    s_sleep 1
    s_branch {lp}
    {ld}:
    s_lshl_b32 s60, 8, s53
    s_cmp_eq_u32 s62, s60
    s_cselect_b32 s52, 1, 0
    """)

def hstore(a, stores, tag=""):
    if ("sc1" + tag) in EXP or "sc1all" in EXP:
        for st in stores:
            a(st + " sc1")
        return
    if ("nt" + tag) in EXP:
        stores = [st + " nt" for st in stores]
    l1, l2 = a.lab("hs"), a.lab("he")
    a(f"s_cmp_eq_u32 s52, 1\ns_cbranch_scc1 {l1}")
    for st in stores:
        a(st + " sc1")
    a(f"s_branch {l2}\n{l1}:")
    for st in stores:
        a(st)
    a(f"{l2}:")

def signal(a, phase):
    lab = a.lab("sig")
    a(f"""
    s_waitcnt vmcnt(0)
    s_barrier
    s_cmp_lg_u32 s3, 7
    s_cbranch_scc1 {lab}
    s_lshl_b32 s60, s5, 7
    s_lshl_b32 s61, s6, 2
    s_add_u32 s60, s60, s61
    s_add_u32 s60, s60, {FLAGS + phase * 4096}
    v_mov_b32 v4, 1
    v_mov_b32 v5, 0
    s_mov_b64 exec, 1
    """)
    hstore(a, ["buffer_store_dword v4, v5, s[40:43], s60 offen"])
    a(f"""
    s_mov_b64 exec, -1
    {lab}:
    """)

def wait_flag(a, phase):
    lp, ld = a.lab("wp"), a.lab("wd")
    a(f"""
    s_lshl_b32 s60, s5, 7
    s_lshl_b32 s61, s3, 2
    s_add_u32 s60, s60, s61
    s_add_u32 s60, s60, {FLAGS + phase * 4096}
    v_mov_b32 v5, 0
    s_mov_b32 s61, 0
    s_mov_b64 exec, 1
    {lp}:
    buffer_load_dword v4, v5, s[40:43], s60 offen sc1
    s_waitcnt vmcnt(0)
    v_readfirstlane_b32 s62, v4
    s_cmp_eq_u32 s62, 1
    s_cbranch_scc1 {ld}
    s_add_u32 s61, s61, 1
    s_cmp_ge_u32 s61, 0x400000
    s_cbranch_scc1 {ld}
    s_sleep 1
    s_branch {lp}
    {ld}:
    s_mov_b64 exec, -1
    """)

def reduce8_write(a, spr=None):
    a(f"""
    s_lshl_b32 s60, s3, 14
    v_add_u32 v0, s60, v3
    """)
    for s in range(8):
        l1, l2 = a.lab("rw"), a.lab("rx")
        a(f"s_cmp_eq_u32 s3, {s}\ns_cbranch_scc1 {l1}")
        for g in range(2):
            a(f"ds_write_b128 v0, {vr(ACC + s * 8 + g * 4)} offset:{LDS_RED + s * 2048 + g * 1024}")
        a(f"s_branch {l2}\n{l1}:")
        for r in range(8):
            a(f"v_mov_b32 v{4 + r}, v{ACC + s * 8 + r}")
        a(f"{l2}:")
        if spr:
            spr.pop(0)(a)

def reduce8_read(a, mid=()):
    a(f"""
    s_lshl_b32 s60, s3, 11
    v_add_u32 v0, s60, v3
    """)
    for d in range(1, 8):
        a(f"""
        s_add_u32 s61, s3, {d}
        s_and_b32 s61, s61, 7
        s_lshl_b32 s61, s61, 14
        v_add_u32 v2, s61, v0
        ds_read_b128 {vr(ACC + (d - 1) * 8)}, v2 offset:{LDS_RED}
        ds_read_b128 {vr(ACC + (d - 1) * 8 + 4)}, v2 offset:{LDS_RED + 1024}
        """)
    for f in mid:
        f(a)
    for d in range(1, 8):
        a(f"s_waitcnt lgkmcnt({(7 - d) * 2})")
        for r in range(8):
            a(f"v_add_f32 v{4 + r}, v{4 + r}, v{ACC + (d - 1) * 8 + r}")

def owner_frag_off(a, sdst, base):
    a(f"""
    s_lshr_b32 s60, s3, 1
    s_and_b32 s56, s60, 1
    s_lshl_b32 s61, s5, 1
    s_add_u32 s56, s56, s61
    s_lshr_b32 s57, s3, 2
    s_lshl_b32 s61, s6, 1
    s_add_u32 s57, s57, s61
    s_lshl_b32 s57, s57, 1
    s_and_b32 s61, s3, 1
    s_add_u32 s57, s57, s61
    s_lshl_b32 s{sdst}, s56, 5
    s_add_u32 s{sdst}, s{sdst}, s57
    s_lshl_b32 s{sdst}, s{sdst}, 10
    s_add_u32 s{sdst}, s{sdst}, {base}
    """)

def resid_epilogue(a, X, sdst, final, sti=None):
    T = ACC
    for r in range(4):
        a(f"v_cvt_pk_bf16_f32 v{T + r}, v{4 + 2 * r}, v{5 + 2 * r}")
    for r in range(4):
        a(f"""
        v_lshlrev_b32 v{4 + 2 * r}, 16, v{T + r}
        v_and_b32 v{5 + 2 * r}, 0xffff0000, v{T + r}
        v_lshlrev_b32 v{T + 8}, 16, v{X + r}
        v_and_b32 v{T + 9}, 0xffff0000, v{X + r}
        v_add_f32 v{4 + 2 * r}, v{4 + 2 * r}, v{T + 8}
        v_add_f32 v{5 + 2 * r}, v{5 + 2 * r}, v{T + 9}
        """)
    for r in range(4):
        a(f"v_cvt_pk_bf16_f32 v{T + r}, v{4 + 2 * r}, v{5 + 2 * r}")
    lf1, lf2 = a.lab("fin"), a.lab("fie")
    if final is None:
        a(f"s_cmp_lg_u32 s38, 0\ns_cbranch_scc1 {lf1}")
    if True:
        for r in range(4):
            a(f"v_lshlrev_b32 v{4 + 2 * r}, 16, v{T + r}\nv_and_b32 v{5 + 2 * r}, 0xffff0000, v{T + r}")
        a(f"""
        v_add_f32 v{T + 8}, v4, v5
        v_mul_f32 v{T + 9}, v4, v4
        v_fmac_f32 v{T + 9}, v5, v5
        """)
        for r in range(2, 8):
            a(f"v_add_f32 v{T + 8}, v{T + 8}, v{4 + r}\nv_fmac_f32 v{T + 9}, v{4 + r}, v{4 + r}")
        a(f"""
        v_mov_b32 v{T + 10}, v{T + 8}
        v_mov_b32 v{T + 11}, v{T + 9}
        v_and_b32 v0, 31, v1
        v_lshlrev_b32 v0, 3, v0
        v_permlane32_swap_b32 v{T + 8}, v{T + 10}
        v_permlane32_swap_b32 v{T + 9}, v{T + 11}
        s_lshl_b32 s60, s56, 5
        s_add_u32 s60, s60, s57
        s_lshl_b32 s60, s60, 8
        s_add_u32 s60, s60, {sti}
        v_add_f32 v{T + 8}, v{T + 8}, v{T + 10}
        v_add_f32 v{T + 9}, v{T + 9}, v{T + 11}
        """)
        hstore(a, [f"buffer_store_dwordx4 {vr(T)}, v3, s[40:43], s{sdst} offen",
                   f"buffer_store_dwordx2 v[{T + 8}:{T + 9}], v0, s[40:43], s60 offen"], "x")
    if final is None:
        a(f"s_branch {lf2}\n{lf1}:")
        srd(a, 64, P_OUT, 2048 * 1024)
        a(f"""
        v_and_b32 v0, 31, v1
        v_lshlrev_b32 v0, 10, v0
        v_lshrrev_b32 v2, 5, v1
        v_lshl_add_u32 v0, v2, 3, v0
        s_lshl_b32 s60, s56, 15
        s_lshl_b32 s61, s57, 5
        s_add_u32 s60, s60, s61
        buffer_store_dwordx2 {vr(T, 2)}, v0, s[64:67], s60 offen{wt('outs')}
        buffer_store_dwordx2 {vr(T + 2, 2)}, v0, s[64:67], s60 offen offset:16{wt('outs')}
        """)
        a(f"{lf2}:")

def phase_att(a, prefetch):
    Q, O = 16, 20
    SB = (36, 52)
    P = 68
    KF = (76, 80)
    VF = ((84, 88), (92, 96))
    LK, LV = 0, 65536
    qf, kf, vf, of, kn = Q_F, K_F, VT_F, O_F, KN2
    a(f"""
    s_add_u32 s60, s36, {kn}
    s_addc_u32 s61, s37, 0
    s_add_u32 s60, s60, s39
    s_addc_u32 s61, s61, 0
    s_load_dwordx16 s[64:79], s[60:61], 0
    s_load_dwordx16 s[80:95], s[60:61], 64
    s_and_b32 s7, s3, 1
    s_lshl_b32 s8, s5, 1
    s_add_u32 s8, s8, s7
    s_lshr_b32 s9, s3, 1
    s_lshl_b32 s10, s6, 2
    s_add_u32 s9, s9, s10
    s_lshl_b32 s8, s8, 5
    s_add_u32 s8, s8, s9
    s_lshl_b32 s8, s8, 10
    s_add_u32 s9, s8, {qf}
    s_add_u32 s8, s8, {of}
    buffer_load_dwordx4 {vr(Q)}, v3, s[40:43], s9 offen
    s_lshl_b32 s10, s3, 10
    """)
    def dma_k(c):
        a(f"""
        s_add_u32 m0, s10, {LK + c * 8192}
        s_add_u32 s14, s10, {kf + c * 8192}
        buffer_load_dwordx4 v3, s[40:43], s14 offen lds
        """)
    def dma_v(cp, j):
        if j < 2:
            a(f"""
            s_add_u32 m0, s10, {LV + cp * 17408 + j * 8192}
            s_add_u32 s14, s10, {vf + cp * 17408 + j * 8192}
            buffer_load_dwordx4 v3, s[40:43], s14 offen lds
            """)
        else:
            a(f"""
            s_mov_b32 m0, {LV + cp * 17408 + 16384}
            s_mov_b32 s14, {vf + cp * 17408 + 16384}
            buffer_load_dwordx4 v3, s[40:43], s14 offen lds
            """)
    vm = []
    def issue_group(g):
        cp = g // 2
        dma_k(g); vm.append(("g", g))
        if g % 2 == 0:
            dma_v(cp, 0); vm.append(("g", g))
            dma_v(cp, 1); vm.append(("g", g))
        else:
            dma_v(cp, 2); vm.append(("g", g))
    issue_group(0)
    issue_group(1)
    a(f"""
    v_and_b32 v10, 31, v1
    v_lshrrev_b32 v12, 5, v1
    v_lshl_add_u32 v12, v12, 4, v10
    v_lshlrev_b32 v12, 4, v12
    v_mov_b32 v11, 528
    v_cmp_eq_u32 vcc, 16, v10
    v_cmp_eq_u32 s[12:13], 20, v10
    s_or_b64 s[12:13], vcc, s[12:13]
    v_mov_b32 v13, 512
    s_nop 1
    v_cndmask_b32 v11, v11, v13, s[12:13]
    v_cmp_gt_u32 vcc, 16, v10
    s_nop 1
    v_cndmask_b32 v12, v11, v12, vcc
    v_add_u32 v12, {LV}, v12
    s_waitcnt lgkmcnt(0)
    """)
    for i in range(1, 32):
        a(f"s_max_u32 s64, s64, s{64 + i}")
    a(f"""
    s_load_dwordx16 s[68:83], s[60:61], 128
    s_load_dwordx16 s[84:99], s[60:61], 192
    """)
    for r in range(16):
        a(f"v_mov_b32 v{O + r}, 0")
    a("s_waitcnt lgkmcnt(0)")
    for i in range(32):
        a(f"s_max_u32 s64, s64, s{68 + i}")
    a(f"""
    s_waitcnt vmcnt({len(vm)})
    v_mov_b32 v13, 0
    """)
    for r in range(4):
        a(f"v_dot2_f32_bf16 v13, v{Q + r}, v{Q + r}, v13")
    a(f"""
    s_nop 3
    v_mov_b32 v14, v13
    s_nop 1
    v_permlane32_swap_b32 v13, v14
    s_nop 1
    v_add_f32 v13, v13, v14
    v_mul_f32 v13, s64, v13
    v_cmp_ge_f32 vcc, 0x45610000, v13
    s_nop 4
    s_cmp_eq_u64 vcc, exec
    s_cselect_b32 s20, 0, 1
    """)
    if INSTR:
        a(f"{'s_memrealtime' if RT else 's_memtime'} s[96:97]\ns_waitcnt lgkmcnt(0)\ns_mov_b32 s98, s96")
    stamp(a, 0)
    NT = 64
    pf_list = list(prefetch)
    def rdK(i):
        a(f"ds_read_b128 {vr(KF[i % 2])}, v3 offset:{i * 1024}")
    def rdV(i):
        c, j = divmod(i, 16)
        if j == 0 and c > 0:
            a(f"v_add_u32 v12, 17408, v12")
        a(f"""
        ds_read_b128 {vr(VF[i % 2][0])}, v12 offset:{j * 1088}
        ds_read_b128 {vr(VF[i % 2][1])}, v12 offset:{j * 1088 + 544}
        """)
    def qk(i):
        a(f"v_mfma_f32_32x32x16_bf16 {vr(SB[i % 2], 16)}, {vr(KF[i % 2])}, {vr(Q)}, 0")
    def pv(i, t):
        a(f"v_mfma_f32_32x32x16_bf16 {vr(O, 16)}, {vr(VF[i % 2][t])}, {vr(P + 4 * t)}, {vr(O, 16)}")
    def group_wait(g):
        last = max(i for i, t in enumerate(vm) if t == ("g", g))
        a(f"s_waitcnt vmcnt({min(63, len(vm) - 1 - last)})\ns_barrier")
    NBAR = 0
    slow = a.lab("slow")
    done = a.lab("attdone")
    group_wait(0)
    stamp(a, 1)
    a(f"s_cmp_lg_u32 s20, 0\ns_cbranch_scc1 {slow}")
    vm_at_branch = list(vm)
    if "prioA" in EXP:
        lab = a.lab("pr")
        a(f"s_cmp_lt_u32 s3, 4\ns_cbranch_scc1 {lab}\ns_setprio 1\n{lab}:")
    rdK(0); rdK(1); rdV(0)
    a("s_waitcnt lgkmcnt(3)")
    qk(0)
    a.nop(12)
    def exps(s, lo, hi):
        for r in range(lo, hi):
            a(f"v_exp_f32 v{s + r}, v{s + r}")
    def cvts(s, lo, hi):
        for r in range(lo, hi):
            a(f"v_cvt_pk_bf16_f32 v{P + r}, v{s + 2 * r}, v{s + 2 * r + 1}")
    dma_ops = []
    for g in range(2, 8):
        cp = g // 2
        dma_ops.append((lambda: None, g))
    pending_groups = list(range(2, 8))
    BAR_GROUPS = [1, 3, 7]
    avail = 0
    for i in range(NT):
        s = SB[i % 2]
        if "prioB" in EXP:
            a(f"s_setprio {i % 2}")
        if "prioC" in EXP:
            a(f"s_setprio {(i // 2) % 2}")
        if "prioD" in EXP:
            a(f"s_setprio {3 - (i % 4)}")
        if "bar4" in EXP and i % 4 == 0 and i > 0:
            a("s_barrier"); NBAR += 1
        if "bar2" in EXP and i % 2 == 0 and i > 0:
            a("s_barrier"); NBAR += 1
        exps(s, 0, 4)
        if i > 0:
            pv(i - 1, 1)
        exps(s, 4, 8)
        need = (i + 2) // 8 if i + 2 < NT else 7
        if need > avail:
            g = min(x for x in BAR_GROUPS if x >= need)
            group_wait(g); NBAR += 1
            avail = g
        if i + 1 < NT:
            a("s_waitcnt lgkmcnt(2)" if i > 0 else "s_waitcnt lgkmcnt(2)")
        cvts(s, 0, 4)
        if i + 1 < NT:
            qk(i + 1)
            if i + 2 < NT:
                rdK(i + 2)
        exps(s, 8, 12)
        a(f"s_waitcnt lgkmcnt({1 if i + 2 < NT else 0})")
        pv(i, 0)
        exps(s, 12, 16)
        if pending_groups:
            issue_group(pending_groups.pop(0))
        elif pf_list:
            fn = pf_list.pop(0)
            if "noattpf" in EXP and len(pf_list) > 0:
                a("s_nop 0")
            else:
                fn(a)
                vm.append(("p", 0))
        else:
            a("s_nop 0")
        cvts(s, 4, 8)
        if i + 1 < NT:
            rdV(i + 1)
    a.nop(2)
    pv(NT - 1, 1)
    a("s_setprio 0")
    assert not pf_list
    a(f"s_branch {done}")
    NEGM = SB[1]
    l_mx, l_sl = a.lab("mx"), a.lab("sl")
    a(f"{slow}:")
    for g in range(2, 8):
        issue_group(g)
    for f in prefetch:
        f(a)
    a("s_waitcnt vmcnt(0)")
    for _ in range(NBAR):
        a("s_barrier")
    a(f"""
    v_mov_b32 v8, v3
    v_mov_b32 v13, 0xff800000
    s_mov_b32 s21, 0
    {l_mx}:
    ds_read_b128 {vr(KF[0])}, v8
    s_waitcnt lgkmcnt(0)
    v_mfma_f32_32x32x16_bf16 {vr(SB[0], 16)}, {vr(KF[0])}, {vr(Q)}, 0
    """)
    a.nop(16)
    for r in range(0, 16, 2):
        a(f"v_max3_f32 v13, v{SB[0] + r}, v{SB[0] + r + 1}, v13")
    a(f"""
    v_add_u32 v8, 1024, v8
    s_add_u32 s21, s21, 1
    s_cmp_lt_u32 s21, 64
    s_cbranch_scc1 {l_mx}
    v_xor_b32 v14, 32, v1
    v_lshlrev_b32 v14, 2, v14
    ds_bpermute_b32 v15, v14, v13
    s_waitcnt lgkmcnt(0)
    v_max_f32 v13, v13, v15
    v_sub_f32 v13, 0, v13
    """)
    for r in range(16):
        a(f"v_mov_b32 v{NEGM + r}, v13")
    a(f"""
    v_mov_b32 v8, v3
    s_mov_b32 s21, 0
    {l_sl}:
    ds_read_b128 {vr(KF[0])}, v8
    ds_read_b128 {vr(VF[0][0])}, v12
    ds_read_b128 {vr(VF[0][1])}, v12 offset:544
    s_waitcnt lgkmcnt(0)
    v_mfma_f32_32x32x16_bf16 {vr(SB[0], 16)}, {vr(KF[0])}, {vr(Q)}, {vr(NEGM, 16)}
    """)
    a.nop(16)
    for r in range(16):
        a(f"v_exp_f32 v{SB[0] + r}, v{SB[0] + r}")
    a("s_nop 0")
    for r in range(8):
        a(f"v_cvt_pk_bf16_f32 v{P + r}, v{SB[0] + 2 * r}, v{SB[0] + 2 * r + 1}")
    a(f"""
    s_nop 1
    v_mfma_f32_32x32x16_bf16 {vr(O, 16)}, {vr(VF[0][0])}, {vr(P)}, {vr(O, 16)}
    v_mfma_f32_32x32x16_bf16 {vr(O, 16)}, {vr(VF[0][1])}, {vr(P + 4)}, {vr(O, 16)}
    v_add_u32 v8, 1024, v8
    v_add_u32 v12, 1088, v12
    s_add_u32 s21, s21, 1
    s_cmp_lt_u32 s21, 64
    s_cbranch_scc1 {l_sl}
    {done}:
    """)
    a.nop(16)
    a(f"v_rcp_f32 v13, v{O + 8}\ns_nop 0")
    for r in range(8):
        a(f"v_mul_f32 v{O + r}, v13, v{O + r}")
    for r in range(4):
        a(f"v_cvt_pk_bf16_f32 v{P + r}, v{O + 2 * r}, v{O + 2 * r + 1}")
    place_resolve(a)
    hstore(a, [f"buffer_store_dwordx4 {vr(P)}, v3, s[40:43], s8 offen"], "o")


def phase_wo(a, post_pf):
    dstamp(a, "wo", 0)
    B = 80
    xin, xout, of = XIN_F, X1_F, O_F
    a(f"""
    s_lshl_b32 s8, s5, 16
    s_lshl_b32 s9, s3, 12
    s_add_u32 s8, s8, s9
    s_add_u32 s8, s8, {of}
    s_add_u32 s9, s8, 32768
    """)
    for k in range(4):
        a(f"buffer_load_dwordx4 {vr(B + k * 8)}, v3, s[40:43], s8 offen offset:{k * 1024} sc1")
        a(f"buffer_load_dwordx4 {vr(B + k * 8 + 4)}, v3, s[40:43], s9 offen offset:{k * 1024} sc1")
    owner_frag_off(a, 58, 0)
    lr1, lr2 = a.lab("rr"), a.lab("rs")
    srd(a, 64, P_X, 2048 * 1024)
    a(f"""
    s_add_u32 s59, s58, {xout}
    s_cmp_lg_u32 s38, 0
    s_cbranch_scc1 {lr1}
    v_and_b32 v0, 31, v1
    v_lshlrev_b32 v0, 10, v0
    v_lshrrev_b32 v2, 5, v1
    v_lshl_add_u32 v0, v2, 3, v0
    s_lshl_b32 s60, s56, 15
    s_lshl_b32 s61, s57, 5
    s_add_u32 s60, s60, s61
    buffer_load_dwordx2 v[12:13], v0, s[64:67], s60 offen
    buffer_load_dwordx2 v[14:15], v0, s[64:67], s60 offen offset:16
    s_branch {lr2}
    {lr1}:
    s_add_u32 s58, s58, {xin}
    buffer_load_dwordx2 v[12:13], v3, s[40:43], s58 offen
    buffer_load_dwordx2 v[14:15], v3, s[40:43], s58 offen offset:8
    {lr2}:
    """)
    NR = 2
    dstamp(a, "wo", 1)
    for k in range(4):
        a(f"s_waitcnt vmcnt({(3 - k) * 2 + NR})")
        dstamp(a, "wo", 2 + k)
        for n in range(2):
            for t in range(2):
                c = vr(ACC + (n * 2 + t) * 16, 16)
                a(f"v_mfma_f32_32x32x16_bf16 {c}, {vr(R_WOA + (n * 4 + k) * 4)}, {vr(B + k * 8 + t * 4)}, {'0' if k == 0 else c}")
    a.nop(14)
    dstamp(a, "wo", 6)
    spr = list(post_pf)
    reduce8_write(a, spr)
    dstamp(a, "wo", 7)
    a("s_waitcnt lgkmcnt(0)\ns_barrier")
    dstamp(a, "wo", 8)
    reduce8_read(a, spr)
    dstamp(a, "wo", 9)
    a(f"s_waitcnt vmcnt({len(post_pf)})")
    resid_epilogue(a, 12, 59, False, STX1)
    dstamp(a, "wo", 10)

def phase_ffn1(a, loop_pf):
    A1, BB = 16, 48
    CS = 208
    DB = 4
    xin, hf = X1_F, H_F
    a(f"""
    s_lshl_b32 s8, s5, 16
    s_lshl_b32 s9, s3, 12
    s_add_u32 s8, s8, s9
    s_add_u32 s8, s8, {xin}
    s_mov_b32 m0, s9
    s_add_u32 s10, s8, 32768
    """)
    for i in range(4):
        a(f"buffer_load_dwordx4 v3, s[40:43], s8 offen offset:{i * 1024} sc1 lds")
    a("s_add_u32 m0, s9, 32768\ns_nop 0")
    for i in range(4):
        a(f"buffer_load_dwordx4 v3, s[40:43], s10 offen offset:{i * 1024} sc1 lds")
    a(f"""
    v_lshrrev_b32 v4, 5, v1
    v_lshlrev_b32 v4, 4, v4
    s_lshl_b32 s11, s51, 7
    s_add_u32 s11, s11, {CS1}
    s_sub_u32 s11, s11, s39
    v_mov_b32 v8, 0
    v_mov_b32 v9, 0
    v_mov_b32 v10, 0
    v_mov_b32 v11, 0
    s_waitcnt vmcnt(0)
    s_barrier
    """)
    stamp(a, 7)
    l_w7, l_join = a.lab("w7"), a.lab("f1j")
    a(f"s_cmp_eq_u32 s3, 7\ns_cbranch_scc1 {l_w7}")
    def rdB(kt):
        b = BB + (kt % DB) * 8
        a(f"ds_read_b128 {vr(b)}, v3 offset:{kt * 1024}")
        a(f"ds_read_b128 {vr(b + 4)}, v3 offset:{32768 + kt * 1024}")
    pf = list(loop_pf)
    vm = []
    for kt in range(DB - 1):
        rdB(kt)
    for kt in range(32):
        if kt + DB - 1 < 32:
            rdB(kt + DB - 1)
        ahead = min(DB - 1, 31 - kt)
        w = f"lgkmcnt({2 * ahead})"
        a(f"s_waitcnt {w}")
        b = BB + (kt % DB) * 8
        for t in range(2):
            c = vr(A1 + t * 16, 16)
            a(f"v_mfma_f32_32x32x16_bf16 {c}, {vr(w1reg(kt))}, {vr(b + t * 4)}, {'0' if kt == 0 else c}")
        if pf and kt % 4 != 3 and pf[0][0] - 12 <= kt:
            fn = pf.pop(0)[1]
            if "nopf" not in EXP:
                fn(a)
                vm.append("p")
        if kt == 20:
            for j in range(4):
                a(f"buffer_load_dwordx4 {vr(CS + j * 4)}, v4, s[40:43], s11 offen offset:{j * 32}")
                vm.append("cs")
    assert not pf
    a.nop(8)
    a(f"s_branch {l_join}\n{l_w7}:")
    sti = STX1
    a(f"""
    v_and_b32 v5, 31, v1
    v_lshlrev_b32 v5, 3, v5
    v_lshrrev_b32 v6, 5, v1
    v_lshl_add_u32 v5, v6, 12, v5
    s_lshl_b32 s60, s5, 14
    s_add_u32 s60, s60, {sti}
    s_add_u32 s61, s60, 8192
    """)
    for t in range(2):
        for i in range(16):
            a(f"buffer_load_dwordx2 v[{16 + t * 32 + 2 * i}:{17 + t * 32 + 2 * i}], v5, s[40:43], s{60 + t} offen offset:{i * 256} sc1")
    a("s_waitcnt vmcnt(0)")
    for t in range(2):
        b = 16 + t * 32
        for i in range(1, 16):
            a(f"v_add_f32 v{b}, v{b}, v{b + 2 * i}\nv_add_f32 v{b + 1}, v{b + 1}, v{b + 2 * i + 1}")
    a(f"""
    v_mov_b32 v4, v16
    v_mov_b32 v6, v17
    v_mov_b32 v8, v48
    v_mov_b32 v10, v49
    v_mov_b32 v12, v16
    v_mov_b32 v13, v17
    v_mov_b32 v14, v48
    v_mov_b32 v15, v49
    s_nop 1
    v_permlane32_swap_b32 v4, v12
    v_permlane32_swap_b32 v6, v13
    v_permlane32_swap_b32 v8, v14
    v_permlane32_swap_b32 v10, v15
    s_nop 1
    v_add_f32 v4, v4, v12
    v_add_f32 v6, v6, v13
    v_add_f32 v8, v8, v14
    v_add_f32 v10, v10, v15
    """)
    stats_finish(a, 4, 6, 16, 17, 12, 13)
    stats_finish(a, 8, 10, 18, 19, 12, 13)
    a(f"""
    v_mul_f32 v16, v16, v17
    v_mul_f32 v18, v18, v19
    v_and_b32 v5, 31, v1
    v_lshlrev_b32 v5, 4, v5
    v_add_u32 v5, {LDS_STAT}, v5
    ds_write_b128 v5, v[16:19]
    """)
    for f, fn in loop_pf:
        fn(a)
    a(f"""
    s_waitcnt lgkmcnt(0)
    {l_join}:
    v_and_b32 v5, 31, v1
    v_lshlrev_b32 v5, 4, v5
    v_add_u32 v5, {LDS_STAT}, v5
    s_barrier
    """)
    stamp(a, 8)
    T = 48
    lab = a.lab("f1s")
    a(f"s_cmp_eq_u32 s3, 7\ns_cbranch_scc1 {lab}")
    last = max(i for i, t in enumerate(vm) if t == "cs")
    a(f"""
    ds_read_b128 v[8:11], v5
    s_waitcnt vmcnt({len(vm) - 1 - last}) lgkmcnt(0)
    """)
    for t in range(2):
        for r in range(16):
            c = A1 + t * 16 + r
            a(f"v_mul_f32 v{c}, v{9 + 2 * t}, v{c}")
            a(f"v_fma_f32 v{c}, -v{8 + 2 * t}, v{CS + r}, v{c}")
        for r in range(8):
            a(f"v_cvt_pk_bf16_f32 v{T + t * 8 + r}, v{A1 + t * 16 + 2 * r}, v{A1 + t * 16 + 2 * r + 1}")
        for r in range(8):
            a(f"v_pk_max_i16 v{T + t * 8 + r}, v{T + t * 8 + r}, 0")
    a(f"""
    s_mul_i32 s12, s5, 224
    s_lshl_b32 s13, s51, 1
    s_add_u32 s12, s12, s13
    s_lshl_b32 s12, s12, 10
    s_add_u32 s12, s12, {hf}
    s_add_u32 s13, s12, {112 * 1024}
    """)
    hstore(a, [f"buffer_store_dwordx4 {vr(T)}, v3, s[40:43], s12 offen",
               f"buffer_store_dwordx4 {vr(T + 4)}, v3, s[40:43], s12 offen offset:1024",
               f"buffer_store_dwordx4 {vr(T + 8)}, v3, s[40:43], s13 offen",
               f"buffer_store_dwordx4 {vr(T + 12)}, v3, s[40:43], s13 offen offset:1024"], "h")
    a(f"{lab}:")

def phase_ffn2(a, loop_pf):
    dstamp(a, "f2", 0)
    RB = 208
    D = int(os.environ.get('F2D', '4'))
    xin, hf = X1_F, H_F
    a(f"""
    s_mul_i32 s9, s3, {14 * 1024}
    s_mul_i32 s10, s5, {224 * 1024}
    s_add_u32 s10, s10, s9
    s_add_u32 s10, s10, {hf}
    s_add_u32 s11, s10, {112 * 1024}
    """)
    def load(k):
        b = RB + (k % D) * 8
        o = (k % 4) * 1024
        a(f"buffer_load_dwordx4 {vr(b)}, v3, s[40:43], s10 offen offset:{o} sc1")
        a(f"buffer_load_dwordx4 {vr(b + 4)}, v3, s[40:43], s11 offen offset:{o} sc1")
        if k % 4 == 3:
            a("s_add_u32 s10, s10, 4096\ns_add_u32 s11, s11, 4096")
    owner_frag_off(a, 58, 0)
    a(f"""
    s_add_u32 s59, s58, {XIN_F + ARENA}
    s_add_u32 s58, s58, {xin}
    buffer_load_dwordx4 v[12:15], v3, s[40:43], s58 offen sc1
    """)
    for k in range(D):
        load(k)
    order = []
    for k in range(D):
        order += [("b", k), ("b", k)]
    pf = list(loop_pf)
    dstamp(a, "f2", 1)
    for k in range(14):
        last = max(i for i, t in enumerate(order) if t == ("b", k))
        a(f"s_waitcnt vmcnt({len(order) - 1 - last})")
        if k in (0, 3, 6, 9, 13): dstamp(a, "f2", 2 + (0, 3, 6, 9, 13).index(k))
        b = RB + (k % D) * 8
        for n in range(2):
            for t in range(2):
                c = vr(ACC + (n * 2 + t) * 16, 16)
                a(f"v_mfma_f32_32x32x16_bf16 {c}, {vr(w2reg(k * 2 + n))}, {vr(b + t * 4)}, {'0' if k == 0 else c}")
        if k + D < 14:
            load(k + D)
            order += [("b", k + D)] * 2
    a.nop(14)
    dstamp(a, "f2", 7)
    reduce8_write(a, pf)
    dstamp(a, "f2", 8)
    a("s_waitcnt lgkmcnt(0)\ns_barrier")
    dstamp(a, "f2", 9)
    reduce8_read(a, pf)
    dstamp(a, "f2", 10)
    resid_epilogue(a, 12, 59, None, STXIN + ARENA)
    dstamp(a, "f2", 11)

def phase_qkv(a, layer, raw, after_bar=None):
    dstamp(a, "qkv", 0)
    B = 208
    KV = 80
    CQ = (144, 160)
    CK = 176
    ONES = 192
    qf, kf, vf, kn = Q_F + layer * ARENA, K_F + layer * ARENA, VT_F + layer * ARENA, KN2 + layer * ARENA
    LDS_CS = LDS_STAT + 4096
    owner_frag_off(a, 58, qf)
    if not raw:
        a(f"""
        s_lshl_b32 s8, s5, 16
        s_lshl_b32 s9, s3, 12
        s_add_u32 s8, s8, s9
        s_add_u32 s8, s8, {XIN_F + ARENA}
        s_add_u32 s9, s8, 32768
        """)
        for k in range(4):
            a(f"buffer_load_dwordx4 {vr(B + k * 8)}, v3, s[40:43], s8 offen offset:{k * 1024} sc1")
            a(f"buffer_load_dwordx4 {vr(B + k * 8 + 4)}, v3, s[40:43], s9 offen offset:{k * 1024} sc1")
        a(f"""
        v_and_b32 v6, 31, v1
        v_lshlrev_b32 v6, 3, v6
        v_lshrrev_b32 v7, 5, v1
        v_lshl_add_u32 v6, v7, 9, v6
        s_lshl_b32 s60, s5, 14
        s_lshl_b32 s61, s3, 10
        s_add_u32 s60, s60, s61
        s_add_u32 s60, s60, {STXIN + ARENA}
        s_add_u32 s61, s60, 8192
        buffer_load_dwordx2 v[8:9], v6, s[40:43], s60 offen sc1
        buffer_load_dwordx2 v[200:201], v6, s[40:43], s60 offen offset:256 sc1
        buffer_load_dwordx2 v[10:11], v6, s[40:43], s61 offen sc1
        buffer_load_dwordx2 v[202:203], v6, s[40:43], s61 offen offset:256 sc1
        v_lshrrev_b32 v4, 5, v1
        v_lshlrev_b32 v4, 4, v4
        s_lshl_b32 s60, s57, 6
        s_add_u32 s60, s60, {CSQ}
        buffer_load_dwordx4 v[240:243], v4, s[40:43], s60 offen
        buffer_load_dwordx4 v[244:247], v4, s[40:43], s60 offen offset:32
        s_mov_b32 s60, {CSKV}
        buffer_load_dwordx4 v[248:251], v4, s[40:43], s60 offen
        buffer_load_dwordx4 v[252:255], v4, s[40:43], s60 offen offset:32
        v_and_b32 v5, 31, v1
        v_lshlrev_b32 v5, 2, v5
        buffer_load_dword v15, v5, s[40:43], s60 offen
        """)
        NX = 9
    else:
        for r in range(4):
            a(f"v_mov_b32 v{8 + r}, 0\nv_mov_b32 v{ONES + r}, s50")
    dstamp(a, "qkv", 1)
    for k in range(4):
        if not raw:
            a(f"s_waitcnt vmcnt({(3 - k) * 2 + NX})")
        else:
            a(f"s_waitcnt lgkmcnt({(3 - k) * 6})") if False else None
        if k in (0, 3): dstamp(a, "qkv", 2 + (k == 3))
        for n in range(2):
            for t in range(2):
                c = vr(ACC + (n * 2 + t) * 16, 16)
                a(f"v_mfma_f32_32x32x16_bf16 {c}, {vr(R_WQA + (n * 4 + k) * 4)}, {vr(B + k * 8 + t * 4)}, {'0' if k == 0 else c}")
            if raw:
                c = vr(CQ[n], 16)
                a(f"v_mfma_f32_32x32x16_bf16 {c}, {vr(ONES)}, {vr(R_WQA + (n * 4 + k) * 4)}, {'0' if k == 0 else c}")
        if raw:
            for t in range(2):
                for r in range(4):
                    b = B + k * 8 + t * 4 + r
                    a(f"v_dot2_f32_bf16 v{8 + 2 * t}, v{b}, s50, v{8 + 2 * t}")
                    a(f"v_dot2_f32_bf16 v{9 + 2 * t}, v{b}, v{b}, v{9 + 2 * t}")
    lend = a.lab("kve")
    a(f"s_cmp_ge_u32 s6, 4\ns_cbranch_scc1 {lend}")
    if raw:
        for k in range(4):
            c = vr(CK, 16)
            a(f"v_mfma_f32_32x32x16_bf16 {c}, {vr(ONES)}, {vr(R_WKV + k * 4)}, {'0' if k == 0 else c}")
    for m in range(4):
        t = m & 1
        lnext = a.lab("kvn")
        a(f"s_cmp_lg_u32 s6, {m}\ns_cbranch_scc1 {lnext}")
        for k in range(4):
            w, x = vr(R_WKV + k * 4), vr(B + k * 8 + t * 4)
            c = vr(KV, 16)
            if m < 2:
                a(f"v_mfma_f32_32x32x16_bf16 {c}, {w}, {x}, {'0' if k == 0 else c}")
            else:
                a(f"v_mfma_f32_32x32x16_bf16 {c}, {x}, {w}, {'0' if k == 0 else c}")
        a(f"s_branch {lend}\n{lnext}:")
    a(f"{lend}:")
    if not raw:
        a(f"""
        s_waitcnt vmcnt(5)
        v_add_f32 v8, v8, v200
        v_add_f32 v9, v9, v201
        v_add_f32 v10, v10, v202
        v_add_f32 v11, v11, v203
        """)
    else:
        a.nop(4)
    a(f"""
    v_mov_b32 v4, v8
    v_mov_b32 v5, v9
    v_mov_b32 v6, v10
    v_mov_b32 v7, v11
    s_lshl_b32 s60, s3, 9
    v_and_b32 v14, 31, v1
    v_permlane32_swap_b32 v8, v4
    v_permlane32_swap_b32 v9, v5
    v_permlane32_swap_b32 v10, v6
    v_permlane32_swap_b32 v11, v7
    v_lshlrev_b32 v14, 4, v14
    v_add_u32 v14, {LDS_STAT}, v14
    v_add_f32 v8, v8, v4
    v_add_f32 v9, v9, v5
    v_add_f32 v10, v10, v6
    v_add_f32 v11, v11, v7
    v_add_u32 v4, s60, v14
    """)
    a.nop(6)
    dstamp(a, "qkv", 4)
    if raw:
        after_bar(a)
        a("s_barrier")
    a("ds_write_b128 v4, v[8:11]")
    if raw:
        a(f"""
        s_mul_i32 s60, s3, 384
        v_and_b32 v5, 31, v1
        v_lshlrev_b32 v5, 2, v5
        v_add_u32 v5, s60, v5
        v_add_u32 v5, {LDS_CS}, v5
        ds_write_b32 v5, v{CQ[0]}
        ds_write_b32 v5, v{CQ[1]} offset:128
        ds_write_b32 v5, v{CK} offset:256
        """)
    reduce8_write(a)
    l1, l1b = a.lab("kvw"), a.lab("kvx")
    a(f"""
    s_cmp_ge_u32 s6, 4
    s_cbranch_scc1 {l1}
    s_mul_i32 s60, s3, {16384 + 2048}
    v_add_u32 v2, s60, v3
    ds_write_b128 v2, {vr(KV)} offset:{LDS_RED}
    ds_write_b128 v2, {vr(KV + 4)} offset:{LDS_RED + 1024}
    s_cmp_lt_u32 s6, 2
    s_cbranch_scc1 {l1}
    s_lshl_b32 s60, s3, 11
    v_add_u32 v2, s60, v3
    v_add_u32 v2, {LDS_KV2}, v2
    ds_write_b128 v2, {vr(KV + 8)}
    ds_write_b128 v2, {vr(KV + 12)} offset:1024
    {l1}:
    """)
    dstamp(a, "qkv", 5)
    a("""
    s_waitcnt lgkmcnt(0)
    s_barrier
    """)
    dstamp(a, "qkv", 6)
    T = 208
    for w in range(8):
        a(f"ds_read_b128 {vr(T + w * 4)}, v14 offset:{w * 512}")
    a("s_waitcnt lgkmcnt(0)")
    def mid_stats(a):
        for w in range(1, 8):
            for r in range(4):
                a(f"v_add_f32 v{T + r}, v{T + r}, v{T + w * 4 + r}")
        stats_finish(a, T, T + 1, 72 + 160, 73 + 160, 12, 13)
        stats_finish(a, T + 2, T + 3, 74 + 160, 75 + 160, 12, 13)
    M0, R0, M1, R1 = 232, 233, 234, 235
    reduce8_read(a, [mid_stats])
    dstamp(a, "qkv", 7)
    if raw:
        a(f"""
        s_lshr_b32 s60, s3, 2
        s_lshl_b32 s60, s60, 7
        s_and_b32 s61, s3, 1
        s_lshl_b32 s61, s61, 6
        s_add_u32 s60, s60, s61
        v_lshrrev_b32 v2, 5, v1
        v_lshlrev_b32 v2, 4, v2
        v_add_u32 v2, {LDS_CS}, v2
        v_add_u32 v0, s60, v2
        """)
        for w in range(8):
            a(f"ds_read_b128 {vr(16 + w * 8)}, v0 offset:{w * 384}\nds_read_b128 {vr(20 + w * 8)}, v0 offset:{w * 384 + 32}")
        a("s_waitcnt lgkmcnt(0)")
        for r in range(8):
            a(f"v_add_f32 v{240 + r}, v{16 + r}, v{24 + r}")
        for w in range(2, 8):
            for r in range(8):
                a(f"v_add_f32 v{240 + r}, v{240 + r}, v{16 + w * 8 + r}")
    dstamp(a, "qkv", 8)
    l2 = a.lab("qt")
    a(f"""
    v_mov_b32 v12, v{M0}
    v_mov_b32 v13, v{R0}
    s_bitcmp0_b32 s3, 1
    s_cbranch_scc1 {l2}
    v_mov_b32 v12, v{M1}
    v_mov_b32 v13, v{R1}
    {l2}:
    v_mul_f32 v13, 0x3eb8aa3b, v13
    """)
    if not raw:
        a("s_waitcnt vmcnt(0)")
    for r in range(8):
        a(f"v_fma_f32 v{4 + r}, -v12, v{240 + r}, v{4 + r}")
        a(f"v_mul_f32 v{4 + r}, v13, v{4 + r}")
    for r in range(4):
        a(f"v_cvt_pk_bf16_f32 v{64 + r}, v{4 + 2 * r}, v{5 + 2 * r}")
    a(f"buffer_store_dwordx4 v[64:67], v3, s[40:43], s58 offen{wt('qkvs')}")
    dstamp(a, "qkv", 9)
    fin = a.lab("kvfin")
    lv = a.lab("kvv")
    a(f"""
    s_cmp_ge_u32 s6, 4
    s_cbranch_scc1 {fin}
    s_cmp_ge_u32 s3, 2
    s_cbranch_scc1 {fin}
    s_and_b32 s7, s6, 1
    s_lshl_b32 s8, s5, 1
    s_add_u32 s8, s8, s7
    s_cmp_eq_u32 s3, 1
    s_cselect_b32 s9, 1, 0
    s_cmp_lt_u32 s6, 2
    s_cselect_b32 s10, 1, 0
    s_and_b32 s10, s10, s9
    s_cmp_lg_u32 s10, 0
    s_cbranch_scc1 {fin}
    """)
    la, lb = a.lab("ka"), a.lab("kb")
    a(f"""
    s_cmp_eq_u32 s3, 1
    s_cbranch_scc1 {la}
    v_add_u32 v2, {LDS_RED}, v3
    s_mov_b32 s11, {16384 + 2048}
    s_branch {lb}
    {la}:
    v_add_u32 v2, {LDS_KV2}, v3
    s_mov_b32 s11, 2048
    {lb}:
    """)
    for w in range(8):
        a(f"ds_read_b128 {vr(144 + w * 8)}, v2\nds_read_b128 {vr(148 + w * 8)}, v2 offset:1024\nv_add_u32 v2, s11, v2")
    if raw:
        a(f"""
        v_lshrrev_b32 v2, 5, v1
        v_lshlrev_b32 v2, 4, v2
        v_add_u32 v2, {LDS_CS + 256}, v2
        v_and_b32 v0, 15, v1
        v_lshlrev_b32 v0, 2, v0
        v_add_u32 v0, {LDS_CS + 256}, v0
        s_waitcnt lgkmcnt(0)
        """)
        for w in range(8):
            a(f"ds_read_b128 {vr(16 + w * 8)}, v2 offset:{w * 384}\nds_read_b128 {vr(20 + w * 8)}, v2 offset:{w * 384 + 32}")
        a("s_waitcnt lgkmcnt(0)")
        for w in range(8):
            a(f"ds_read_b32 v{80 + w}, v0 offset:{w * 384}")
        for r in range(8):
            a(f"v_add_f32 v{248 + r}, v{16 + r}, v{24 + r}")
        for w in range(2, 8):
            for r in range(8):
                a(f"v_add_f32 v{248 + r}, v{248 + r}, v{16 + w * 8 + r}")
        a("s_waitcnt lgkmcnt(0)\nv_add_f32 v15, v80, v81")
        for w in range(2, 8):
            a(f"v_add_f32 v15, v15, v{80 + w}")
    a("s_waitcnt lgkmcnt(0)")
    for w in range(1, 8):
        for r in range(8):
            a(f"v_add_f32 v{144 + r}, v{144 + r}, v{144 + w * 8 + r}")
    l3 = a.lab("kt")
    a(f"""
    s_cmp_eq_u32 s7, 0
    s_cbranch_scc1 {l3}
    v_mov_b32 v{M0}, v{M1}
    v_mov_b32 v{R0}, v{R1}
    {l3}:
    s_cmp_ge_u32 s6, 2
    s_cbranch_scc1 {lv}
    """)
    for r in range(8):
        a(f"v_fma_f32 v{144 + r}, -v{M0}, v{248 + r}, v{144 + r}")
        a(f"v_mul_f32 v{144 + r}, v{R0}, v{144 + r}")
    for r in range(4):
        a(f"v_cvt_pk_bf16_f32 v{160 + r}, v{144 + 2 * r}, v{145 + 2 * r}")
    a(f"""
    s_lshl_b32 s9, s8, 10
    s_add_u32 s9, s9, {kf}
    buffer_store_dwordx4 v[160:163], v3, s[40:43], s9 offen{wt('qkvs')}
    v_mov_b32 v8, 0
    """)
    for r in range(4):
        a(f"v_dot2_f32_bf16 v8, v{160 + r}, v{160 + r}, v8")
    a(f"""
    s_nop 3
    v_mov_b32 v9, v8
    s_nop 1
    v_permlane32_swap_b32 v8, v9
    s_nop 1
    v_add_f32 v8, v8, v9
    s_nop 1
    v_max_f32_dpp v8, v8, v8 row_ror:8 row_mask:0xf bank_mask:0xf
    s_nop 1
    v_max_f32_dpp v8, v8, v8 row_ror:4 row_mask:0xf bank_mask:0xf
    s_nop 1
    v_max_f32_dpp v8, v8, v8 row_ror:2 row_mask:0xf bank_mask:0xf
    s_nop 1
    v_max_f32_dpp v8, v8, v8 row_ror:1 row_mask:0xf bank_mask:0xf
    s_nop 1
    v_mov_b32 v9, v8
    s_nop 1
    v_permlane16_swap_b32 v8, v9
    s_nop 1
    v_max_f32 v8, v8, v9
    s_lshl_b32 s9, s8, 2
    s_add_u32 s9, s9, {kn}
    v_mov_b32 v9, 0
    s_mov_b64 exec, 1
    buffer_store_dword v8, v9, s[40:43], s9 offen
    s_mov_b64 exec, -1
    s_branch {fin}
    {lv}:
    """)
    a(f"""
    s_lshl_b32 s60, s3, 8
    v_and_b32 v4, 31, v1
    v_lshlrev_b32 v4, 2, v4
    v_add_u32 v4, s60, v4
    v_add_u32 v4, {LDS_PRIV}, v4
    ds_write_b32 v4, v{M0}
    ds_write_b32 v4, v{R0} offset:128
    v_lshrrev_b32 v5, 5, v1
    v_lshlrev_b32 v5, 4, v5
    s_lshl_b32 s61, s3, 6
    s_add_u32 s60, s60, s61
    v_add_u32 v5, s60, v5
    v_add_u32 v5, {LDS_PRIV}, v5
    ds_read_b128 v[160:163], v5
    ds_read_b128 v[164:167], v5 offset:32
    ds_read_b128 v[168:171], v5 offset:128
    ds_read_b128 v[172:175], v5 offset:160
    s_waitcnt lgkmcnt(0)
    """)
    for r in range(8):
        a(f"v_fma_f32 v{144 + r}, -v{160 + r}, v15, v{144 + r}")
        a(f"v_mul_f32 v{144 + r}, v{168 + r}, v{144 + r}")
    for r in range(4):
        a(f"v_cvt_pk_bf16_f32 v{176 + r}, v{144 + 2 * r}, v{145 + 2 * r}")
    a(f"""
    v_and_b32 v4, 15, v1
    v_lshrrev_b32 v5, 5, v1
    v_lshl_add_u32 v4, v5, 4, v4
    v_lshlrev_b32 v4, 4, v4
    s_lshl_b32 s9, s8, 1
    s_add_u32 s9, s9, s3
    s_mul_i32 s9, s9, {VSTEP}
    s_add_u32 s9, s9, {vf}
    s_mov_b32 s12, 0xffff0000
    s_mov_b32 s13, 0xffff0000
    s_mov_b64 exec, s[12:13]
    buffer_store_dwordx4 v[176:179], v4, s[40:43], s9 offen{wt('qkvs')}
    s_mov_b64 exec, 3
    v_cmp_eq_u32 vcc, 0, v1
    v_mov_b32 v180, 0
    v_mov_b32 v181, s50
    s_nop 1
    v_cndmask_b32 v180, v180, v181, vcc
    v_mov_b32 v181, v180
    v_mov_b32 v182, v180
    v_mov_b32 v183, v180
    buffer_store_dwordx4 v[180:183], v3, s[40:43], s9 offen offset:512
    s_mov_b64 exec, -1
    {fin}:
    """)

LDS_KV2 = LDS_STAT + 8192
LDS_PRIV = LDS_KV2 + 16384
LDS_TOTAL = LDS_PRIV + 1024

def gen_pre():
    a = Asm("pre")
    name = "pre_kernel"
    begin(a, name, 256)
    group_map(a)
    XIMG, WIMG = 0, 65536
    def pb(i):
        return (80, 128)[i // 4] + (i % 4) * 4
    PF = 208
    LDS_PCS = LDS_STAT + 4096 + 3072
    srd(a, 64, P_X, 2048 * 1024)
    srd(a, 72, P_WQ, 512 * 1024)
    a(f"""
    v_lshrrev_b32 v4, 3, v1
    v_and_b32 v5, 7, v1
    s_mov_b32 s55, 255
    s_mov_b32 s59, 0
    v_mov_b32 v207, 0
    s_mov_b32 s62, 0
    s_mov_b32 s63, 0
    """)
    srd(a, 68, P_WQ, 512 * 1024)
    l_np, l_o, l_1, l_2, l_x, l_ld = a.lab("np"), a.lab("ro"), a.lab("r1"), a.lab("r2"), a.lab("rx"), a.lab("rl")
    a(f"""
    s_cmp_lt_u32 s6, 4
    s_cbranch_scc1 {l_np}
    s_lshl_b32 s55, s5, 2
    s_add_u32 s55, s55, s6
    s_sub_u32 s55, s55, 4
    s_cmp_ge_u32 s55, 72
    s_cbranch_scc1 {l_np}
    s_lshl_b32 s14, s3, 6
    s_mov_b32 s49, 32
    s_cmp_ge_u32 s55, 44
    s_cbranch_scc1 {l_2}
    s_cmp_ge_u32 s55, 16
    s_cbranch_scc1 {l_1}
    s_cmp_ge_u32 s55, 8
    s_cbranch_scc1 {l_o}
    """)
    srd(a, 68, P_WQ, 512 * 1024)
    a(f"""
    s_mov_b32 s13, 1024
    s_lshl_b32 s15, s55, 6
    s_mov_b32 s48, {WQ_F}
    s_mov_b32 s59, {CSQ}
    s_branch {l_ld}
    {l_o}:
    """)
    srd(a, 68, P_WO, 512 * 1024)
    a(f"""
    s_mov_b32 s13, 1024
    s_sub_u32 s15, s55, 8
    s_lshl_b32 s15, s15, 6
    s_mov_b32 s48, {WO_F}
    s_branch {l_ld}
    {l_1}:
    """)
    srd(a, 68, P_W1, 512 * 3584)
    a(f"""
    s_mov_b32 s13, 3584
    s_sub_u32 s15, s55, 16
    s_lshl_b32 s15, s15, 6
    s_mov_b32 s48, {W1_F}
    s_mov_b32 s59, {CS1}
    s_branch {l_ld}
    {l_2}:
    """)
    srd(a, 68, P_W2, 1792 * 1024)
    a(f"""
    s_mov_b32 s13, 1024
    s_sub_u32 s60, s55, 44
    s_lshl_b32 s60, s60, 3
    s_add_u32 s60, s60, s3
    s_mov_b32 s61, 153391690
    s_mul_hi_u32 s15, s60, s61
    s_mul_i32 s61, s15, 28
    s_sub_u32 s14, s60, s61
    s_lshl_b32 s14, s14, 6
    s_lshl_b32 s15, s15, 6
    s_mov_b32 s48, {W2_F}
    s_mov_b32 s49, 112
    {l_ld}:
    v_mul_u32_u24 v6, s13, v4
    v_lshl_add_u32 v6, v5, 4, v6
    s_mul_i32 s60, s14, s13
    s_lshl_b32 s61, s15, 1
    s_add_u32 s60, s60, s61
    s_lshl_b32 s63, s13, 3
    s_mov_b32 s62, s60
    v_mov_b32 v207, v6
    """)
    a(f"{l_np}:")
    lt1, lt2 = a.lab("t1"), a.lab("t2")
    a(f"""
    v_xor_b32 v6, v5, v4
    v_lshlrev_b32 v6, 4, v6
    v_lshl_add_u32 v6, v4, 10, v6
    v_lshlrev_b32 v7, 4, v5
    v_lshl_add_u32 v7, v4, 10, v7
    s_lshl_b32 s8, s5, 16
    s_lshl_b32 s9, s3, 7
    s_add_u32 s8, s8, s9
    s_lshl_b32 s10, s3, 13
    s_lshl_b32 s11, s3, 16
    s_lshl_b32 s9, s6, 7
    s_add_u32 s11, s11, s9
    v_lshlrev_b32 v8, 7, v1
    s_cmp_ge_u32 s3, 3
    s_cbranch_scc1 {lt2}
    s_cmp_eq_u32 s3, 0
    s_cbranch_scc1 {lt1}
    s_lshr_b32 s12, s2, 3
    s_lshl_b32 s12, s12, 1
    s_add_u32 s12, s12, s3
    s_sub_u32 s12, s12, 1
    s_lshl_b32 s12, s12, 13
    buffer_load_dword v9, v8, s[72:75], s12 offen
    s_branch {lt2}
    {lt1}:
    s_lshl_b32 s12, s5, 16
    s_lshl_b32 s9, s6, 13
    s_add_u32 s12, s12, s9
    buffer_load_dword v9, v8, s[64:67], s12 offen
    {lt2}:
    s_waitcnt vmcnt(0)
    s_barrier
    """)
    for i in range(8):
        a(f"""
        s_add_u32 m0, s10, {XIMG + i * 1024}
        s_add_u32 s12, s8, {i * 8192}
        buffer_load_dwordx4 v6, s[64:67], s12 offen lds
        s_add_u32 m0, s10, {WIMG + i * 1024}
        s_add_u32 s12, s11, {i * 8192}
        buffer_load_dwordx4 v7, s[72:75], s12 offen lds
        """)
    dstamp(a, "pre", 0)
    a(f"""
    v_lshrrev_b32 v5, 5, v1
    v_lshrrev_b32 v8, 4, v1
    v_and_b32 v9, 1, v8
    v_and_b32 v10, 15, v1
    v_lshrrev_b32 v11, 2, v10
    v_and_b32 v10, 3, v10
    s_lshl_b32 s12, s3, 11
    s_add_u32 s12, s12, {LDS_KV2}
    v_mov_b32 v14, 0
    v_mov_b32 v15, 0
    """)
    l_m4, l_go, l_v, l_kv, l_z2 = (a.lab(x) for x in ("m4", "go", "wv", "kvd", "z2"))
    a(f"""
    s_cmp_ge_u32 s6, 4
    s_cbranch_scc1 {l_m4}
    s_cmp_ge_u32 s6, 2
    s_cbranch_scc1 {l_v}
    """)
    srd(a, 68, P_WK, 512 * 32)
    a(f"s_branch {l_kv}\n{l_v}:")
    srd(a, 68, P_WV, 512 * 32)
    a(f"""
    {l_kv}:
    s_lshl_b32 s9, s3, 11
    s_mov_b32 m0, s12
    s_nop 0
    buffer_load_dwordx4 v3, s[68:71], s9 offen lds
    buffer_load_dwordx4 v3, s[68:71], s9 offen offset:1024 lds
    {l_z2}:
    s_waitcnt vmcnt(0)
    s_branch {l_go}
    {l_m4}:
    s_cmp_ge_u32 s55, 72
    s_cbranch_scc1 {l_z2}
    """)
    for i in range(8):
        a(f"buffer_load_dwordx4 {vr(pb(i))}, v207, s[68:71], s62 offen\ns_add_u32 s62, s62, s63")
    a(f"""
    s_waitcnt vmcnt(8)
    {l_go}:
    s_mov_b32 s63, s12
    """)
    def prep_share(a):
        l_e, l_z, l_kvp, l_cs = (a.lab(x) for x in ("pe", "pz", "pkv", "pcs"))
        a(f"""
        s_cmp_ge_u32 s55, 74
        s_cbranch_scc1 {l_e}
        v_lshrrev_b32 v196, 5, v1
        v_lshrrev_b32 v197, 4, v1
        v_and_b32 v197, 1, v197
        v_and_b32 v198, 15, v1
        v_lshrrev_b32 v199, 2, v198
        v_and_b32 v198, 3, v198
        v_lshl_add_u32 v200, v196, 2, v199
        v_add_u32 v202, s63, v3
        v_mov_b32 v204, 0
        v_mov_b32 v205, 0
        s_cmp_eq_u32 s55, 73
        s_cbranch_scc1 {l_z}
        s_cmp_eq_u32 s55, 72
        s_cbranch_scc1 {l_kvp}
        v_lshlrev_b32 v201, 7, v200
        v_lshl_add_u32 v201, v197, 5, v201
        v_lshl_add_u32 v201, v198, 3, v201
        v_add_u32 v201, s63, v201
        s_lshr_b32 s60, s15, 5
        s_mul_i32 s60, s60, s49
        s_lshr_b32 s61, s14, 4
        s_add_u32 s60, s60, s61
        s_lshl_b32 s60, s60, 10
        s_add_u32 s60, s60, s48
        s_lshl_b32 s61, s49, 10
        s_add_u32 s61, s61, s60
        s_waitcnt vmcnt(0)
        """)
        for k in range(4):
            a(f"ds_write_b128 v202, {vr(pb(2 * k))}\nds_write_b128 v202, {vr(pb(2 * k + 1))} offset:1024")
            for n in range(2):
                d = PF + (n * 4 + k) * 4
                a(f"ds_read_b64_tr_b16 v[{d}:{d + 1}], v201 offset:{n * 64}")
                a(f"ds_read_b64_tr_b16 v[{d + 2}:{d + 3}], v201 offset:{n * 64 + 1024}")
            a("s_waitcnt lgkmcnt(0)")
            for n in range(2):
                a(f"buffer_store_dwordx4 {vr(PF + (n * 4 + k) * 4)}, v3, s[40:43], s{60 + n} offen offset:{k * 1024}{wt('prew')}")
        a(f"""
        s_cmp_eq_u32 s59, 0
        s_cbranch_scc1 {l_e}
        """)
        for n in range(2):
            for i in range(16):
                a(f"v_dot2_f32_bf16 v{204 + n}, v{PF + n * 16 + i}, s50, v{204 + n}")
        a(f"""
        {l_cs}:
        s_nop 3
        v_mov_b32 v200, v204
        v_mov_b32 v201, v205
        v_and_b32 v196, 31, v1
        v_lshlrev_b32 v196, 2, v196
        v_permlane32_swap_b32 v204, v200
        v_permlane32_swap_b32 v205, v201
        v_add_u32 v196, s63, v196
        s_nop 0
        v_add_f32 v204, v204, v200
        v_add_f32 v205, v205, v201
        ds_write_b32 v196, v204
        ds_write_b32 v196, v205 offset:128
        s_branch {l_e}
        {l_kvp}:
        """)
        srd(a, 68, P_WK, 512 * 32)
        srd(a, 76, P_WV, 512 * 32)
        a(f"""
        v_lshlrev_b32 v201, 5, v200
        v_lshl_add_u32 v201, v197, 10, v201
        v_lshl_add_u32 v201, v198, 3, v201
        v_add_u32 v201, s63, v201
        s_lshl_b32 s60, s3, 12
        s_add_u32 s60, s60, {WKV_F}
        s_mov_b32 s59, {CSKV}
        s_mov_b32 s15, 0
        s_lshl_b32 s9, s3, 11
        buffer_load_dwordx4 {vr(pb(0))}, v3, s[68:71], s9 offen
        buffer_load_dwordx4 {vr(pb(1))}, v3, s[76:79], s9 offen
        buffer_load_dwordx4 {vr(pb(2))}, v3, s[68:71], s9 offen offset:1024
        buffer_load_dwordx4 {vr(pb(3))}, v3, s[76:79], s9 offen offset:1024
        s_waitcnt vmcnt(0)
        """)
        for h in range(2):
            a(f"ds_write_b128 v202, {vr(pb(2 * h))}\nds_write_b128 v202, {vr(pb(2 * h + 1))} offset:1024")
            for k in range(2):
                d = PF + (h * 2 + k) * 4
                a(f"ds_read_b64_tr_b16 v[{d}:{d + 1}], v201 offset:{k * 512}")
                a(f"ds_read_b64_tr_b16 v[{d + 2}:{d + 3}], v201 offset:{k * 512 + 256}")
            a("s_waitcnt lgkmcnt(0)")
        for k in range(4):
            a(f"buffer_store_dwordx4 {vr(PF + k * 4)}, v3, s[40:43], s60 offen offset:{k * 1024}")
        for i in range(16):
            a(f"v_dot2_f32_bf16 v204, v{PF + i}, s50, v204")
        a(f"""
        s_branch {l_cs}
        {l_z}:
        v_mov_b32 v206, 0
        v_mov_b32 v207, 0
        s_and_b32 s60, s3, 3
        s_mul_i32 s60, s60, 6144
        s_lshr_b32 s61, s3, 2
        s_mul_i32 s61, s61, {ARENA}
        s_add_u32 s60, s60, s61
        s_add_u32 s60, s60, {FLAGS}
        s_add_u32 s61, s60, 4096
        """)
        for i in range(4):
            a(f"buffer_store_dwordx4 v[204:207], v3, s[40:43], s60 offen offset:{i * 1024}")
        for i in range(2):
            a(f"buffer_store_dwordx4 v[204:207], v3, s[40:43], s61 offen offset:{i * 1024}")
        a(f"""
        {l_e}:
        s_waitcnt lgkmcnt(0)
        """)
    dstamp(a, "pre", 1)
    a(f"""
    v_and_b32 v4, 31, v1
    v_and_b32 v6, 7, v1
    v_lshlrev_b32 v7, 7, v4
    v_add_u32 v7, s10, v7
    """)
    for k in range(4):
        a(f"""
        v_add_u32 v8, {2 * k}, v5
        v_xor_b32 v8, v8, v6
        v_lshl_add_u32 v8, v8, 4, v7
        ds_read_b128 {vr(208 + k * 8)}, v8 offset:{XIMG}
        ds_read_b128 {vr(208 + k * 8 + 4)}, v8 offset:{XIMG + 4096}
        """)
    a(f"""
    v_lshl_add_u32 v12, v5, 3, v11
    v_lshlrev_b32 v13, 7, v12
    v_lshl_add_u32 v13, v9, 5, v13
    v_lshl_add_u32 v13, v10, 3, v13
    v_add_u32 v13, s10, v13
    v_add_u32 v13, {WIMG}, v13
    v_lshlrev_b32 v14, 5, v12
    v_lshl_add_u32 v14, v10, 3, v14
    v_add_u32 v14, s12, v14
    s_waitcnt lgkmcnt(0)
    """)
    for n in range(2):
        for k in range(4):
            d = R_WQA + (n * 4 + k) * 4
            a(f"ds_read_b64_tr_b16 v[{d}:{d + 1}], v13 offset:{k * 2048 + n * 64}")
            a(f"ds_read_b64_tr_b16 v[{d + 2}:{d + 3}], v13 offset:{k * 2048 + n * 64 + 512}")
        a("s_waitcnt lgkmcnt(0)")
    l_nokv = a.lab("nokv")
    a(f"s_cmp_ge_u32 s6, 4\ns_cbranch_scc1 {l_nokv}")
    for k in range(4):
        d = R_WKV + k * 4
        a(f"ds_read_b64_tr_b16 v[{d}:{d + 1}], v14 offset:{k * 512}")
        a(f"ds_read_b64_tr_b16 v[{d + 2}:{d + 3}], v14 offset:{k * 512 + 128}")
    a(f"s_waitcnt lgkmcnt(0)\n{l_nokv}:")
    dstamp(a, "pre", 2)
    phase_qkv(a, 0, True, prep_share)
    dstamp(a, "pre", 3)
    l_end = a.lab("pend")
    a(f"""
    s_cmp_eq_u32 s59, 0
    s_cbranch_scc1 {l_end}
    s_cmp_lg_u32 s3, 7
    s_cbranch_scc1 {l_end}
    v_lshlrev_b32 v2, 2, v1
    v_add_u32 v4, {LDS_KV2}, v2
    """)
    for i in range(8):
        a(f"ds_read_b32 v{16 + i}, v4 offset:{i * 2048}")
    a("s_waitcnt lgkmcnt(0)")
    for i in range(1, 8):
        a(f"v_add_f32 v16, v16, v{16 + i}")
    a(f"""
    s_lshl_b32 s60, s15, 2
    s_add_u32 s60, s60, s59
    buffer_store_dword v16, v2, s[40:43], s60 offen
    {l_end}:
    """)
    dstamp(a, "pre", 4)
    if INSTR: a("s_waitcnt vmcnt(0)")
    dstamp(a, "pre", 5)
    stamp_flush(a, 15)
    end(a, name)
    KERNELS.append((name, a.text(), 256, 100))
    return f"; @launch kernel={name} grid=(256,1,1) block=(512,1,1) lds={LDS_TOTAL}"

def gen_layers():
    a = Asm("ly")
    a(f"""
    .p2align 8
    layer1_kernel:
    s_mov_b32 s38, 1
    s_mov_b32 s39, {ARENA}
    s_branch layer_body
    """)
    a(""".globl layer0_kernel
    .type layer0_kernel,@function
    .p2align 8
    layer0_kernel:
    s_mov_b32 s38, 0
    s_mov_b32 s39, 0
    layer_body:
    """)
    name = "layer_body"
    a(f"""
    s_cmp_ge_u32 s2, 256
    s_cbranch_scc1 {name}_exit
    s_load_dwordx16 s[16:31], s[0:1], 0
    s_load_dwordx4 s[32:35], s[0:1], 64
    s_load_dwordx2 s[36:37], s[0:1], 80
    v_lshrrev_b32 v2, 6, v0
    v_and_b32 v1, 63, v0
    v_readfirstlane_b32 s3, v2
    v_lshlrev_b32 v3, 4, v1
    s_waitcnt lgkmcnt(0)
    s_add_u32 s40, s36, s39
    s_addc_u32 s41, s37, 0
    s_and_b32 s41, s41, 0xffff
    s_sub_u32 s42, {WS_END}, s39
    s_mov_b32 s43, 0x00020000
    """)
    group_map(a)
    a("""
    s_sub_u32 s44, s44, s39
    s_sub_u32 s45, s45, s39
    s_sub_u32 s46, s46, s39
    s_sub_u32 s47, s47, s39
    """)
    place_register(a)
    pf_att = [(lambda a, i=i: pf_wo(a, i)) for i in range(8)] + [(lambda a, k=k: pf_w1(a, k)) for k in range(28)]
    a("v_lshlrev_b32 v100, 7, v1")
    pf_att += [(lambda a: warm(a, 45, 28 * KB, 32))]
    for n in range(2):
        pf_att += [(lambda a, n=n: warm(a, 46, n * 112 * KB, 64)), (lambda a, n=n: warm(a, 46, n * 112 * KB + 8192, 48))]
    pf_att += [(lambda a: warm(a, 47, 0, 32)), (lambda a: warm(a, 47, 32768, 32))]
    a("v_mov_b32 v103, 0")
    pf_att += [(lambda a: a("buffer_load_dword v102, v103, s[40:43], s54 offen sc1"))]
    phase_att(a, pf_att)
    stamp(a, 2)
    signal(a, 0)
    stamp(a, 3)
    wait_flag(a, 0)
    stamp(a, 4)
    NW2_WO = 6
    phase_wo(a, [(lambda a, k=k: pf_w1(a, k)) for k in range(28, 32)] + [(lambda a, f=f: pf_w2(a, f)) for f in range(NW2_WO)])
    stamp(a, 5)
    signal(a, 1)
    dstamp(a, "wo", 11)
    wait_flag(a, 1)
    dstamp(a, "wo", 12)
    stamp(a, 6)
    phase_ffn1(a, [(f, (lambda a, f=f: pf_w2(a, f))) for f in range(NW2_WO, 28)])
    stamp(a, 9)
    signal(a, 2)
    wait_flag(a, 2)
    stamp(a, 10)
    def guarded(fn):
        def g(a):
            lab = a.lab("gq")
            a(f"s_cmp_lg_u32 s38, 0\ns_cbranch_scc1 {lab}")
            fn(a)
            a(f"{lab}:")
        return g
    pfq = [guarded(lambda a, i=i: pf_wq(a, i)) for i in range(8)] + [guarded(lambda a, k=k: pf_wkv(a, k)) for k in range(4)]
    phase_ffn2(a, pfq)
    stamp(a, 11)
    lskip = a.lab("noq")
    a(f"s_cmp_lg_u32 s38, 0\ns_cbranch_scc1 {lskip}")
    signal(a, 3)
    wait_flag(a, 3)
    stamp(a, 12)
    phase_qkv(a, 1, False)
    dstamp(a, "qkv", 10)
    stamp(a, 13)
    a(f"{lskip}:")
    if INSTR:
        a("s_waitcnt vmcnt(0)")
    stamp(a, 14)
    stamp_flush(a, 15)
    end(a, name)
    KERNELS.append(("layer1_kernel", a.text(), 256, 100))
    KERNELS.append(("layer0_kernel", None, 256, 100))
    return [f"; @launch kernel=layer{l}_kernel grid=(256,1,1) block=(512,1,1) lds={LDS_TOTAL}" for l in range(2)]

def main():
    launches = [gen_pre()] + gen_layers()
    hdr = open("interleave_layers__grouped_kv_mqa__dense_activation_relu__prompt.s.ref").read().split("; Override launch")[0]
    s = hdr + "\n".join(launches) + "\n"
    s += '.amdgcn_target "amdgcn-amd-amdhsa--gfx950"\n.text\n'
    for n, t, nv, ns in KERNELS:
        if t is not None:
            s += f".globl {n}\n.type {n},@function\n" + t
    s += '.section .rodata,"a"\n'
    for n, t, nv, ns in KERNELS:
        s += f""".p2align 6
.amdhsa_kernel {n}
  .amdhsa_next_free_vgpr {nv}
  .amdhsa_next_free_sgpr {100 if INSTR else ns}
  .amdhsa_accum_offset {(nv + 3) // 4 * 4}
  .amdhsa_group_segment_fixed_size 0
  .amdhsa_kernarg_size 88
  .amdhsa_user_sgpr_count 2
  .amdhsa_user_sgpr_kernarg_segment_ptr 1
  .amdhsa_system_sgpr_workgroup_id_x 1
.end_amdhsa_kernel
"""
    open(OUT, "w").write(s)

if __name__ == "__main__":
    main()
```
